```python
import torch

def _softmax(x, axis=-1):
    return torch.softmax(x, dim=axis)
def _gelu(x):
    return torch.nn.functional.gelu(x, approximate="tanh")
def _silu(x):
    return torch.nn.functional.silu(x)
def _sigmoid(x):
    return torch.sigmoid(x)
def _layernorm(x, axis=-1, eps=1e-5):
    m = x.mean(dim=axis, keepdim=True)
    v = x.var(dim=axis, keepdim=True, unbiased=False)
    return (x - m) / torch.sqrt(v + eps)
def _scatter_add(tgt, idx, src, axis=0):
    return tgt.clone().index_add_(axis, idx, src)
def _segment_sum(src, seg, n):
    out = torch.zeros((n,) + src.shape[1:], dtype=src.dtype)
    return out.index_add_(0, seg, src)
def _pad(x, pw):
    flat = tuple(v for pair in reversed(pw) for v in pair)
    return torch.nn.functional.pad(x, flat)

kernel_name = 'interleave_layers__ssm_conv_h3__dense_activation_relu__prompt'

def setup_inputs():

    _w = (lambda a: (lambda t: t.to(torch.bfloat16) if t.is_floating_point() else t)(torch.as_tensor(a)))
    def _A_setup():
        B, S, D = 1, 2048, 640
        ks = 4
        return {
            "q": _w((lambda *s: torch.randn(*s, dtype=torch.bfloat16) * 0.05)(B, S, D)),
            "k": _w((lambda *s: torch.randn(*s, dtype=torch.bfloat16) * 0.8)(B, S, D)),
            "v": _w((lambda *s: torch.randn(*s, dtype=torch.bfloat16) * 0.8)(B, S, D)),
            "shift_k": _w((lambda *s: torch.randn(*s, dtype=torch.bfloat16) * 0.8)(D, ks) * 0.5),
            "ssm_k": _w((lambda *s: torch.randn(*s, dtype=torch.bfloat16) * 0.8)(D, S) * (1.0 / S ** 0.5)),
            "ssm_D": _w((lambda *s: torch.randn(*s, dtype=torch.bfloat16) * 0.8)(D)),
        }
    _A_in = _A_setup()

    def _B_setup():
        B, S, D, Dff = 1, 2048, 640, 1728
        return {
            "x": _w((lambda *s: torch.randn(*s, dtype=torch.bfloat16) * 0.05)(B, S, D)),
            "w1": _w((lambda *s: torch.randn(*s, dtype=torch.bfloat16) * 0.1)(D, Dff)),
            "w2": _w((lambda *s: torch.randn(*s, dtype=torch.bfloat16) * 0.1)(Dff, D)),
        }
    _B_in = _B_setup()

    return {
        "A_q": _A_in["q"],
        "A_k": _A_in["k"],
        "A_v": _A_in["v"],
        "A_shift_k": _A_in["shift_k"],
        "A_ssm_k": _A_in["ssm_k"],
        "A_ssm_D": _A_in["ssm_D"],
        "B_x": _B_in["x"],
        "B_w1": _B_in["w1"],
        "B_w2": _B_in["w2"],
    }

def reference(A_q, A_k, A_v, A_shift_k, A_ssm_k, A_ssm_D, B_x, B_w1, B_w2):
    def _A_ref(q, k, v, shift_k, ssm_k, ssm_D):
        B, S, D = q.shape
        ks = shift_k.shape[-1]
        k_pad = _pad(k, ((0, 0), (ks - 1, 0), (0, 0)))
        k_shift = torch.zeros_like(k)
        for t in range(ks):
            k_shift = k_shift + k_pad[:, t:t + S, :] * shift_k[:, ks - 1 - t][None, None, :]
        kv = k_shift * v
        L = 2 * S
        kv_pad = _pad(kv, ((0, 0), (0, S), (0, 0)))
        kf_pad = _pad(ssm_k, ((0, 0), (0, S)))
        kv_f = (lambda x, axes=(-2,-1): torch.fft.rfft2(x.float(), dim=axes))(kv_pad[:, None, :, :], axes=(1, 2))
        kf_f = (lambda x, axes=(-2,-1): torch.fft.rfft2(x.float(), dim=axes))(kf_pad[:, None, :], axes=(1, 2))
        kf_f = (lambda x, *d: x.permute(*d))(kf_f, 1, 2, 0)
        y_f = kv_f * kf_f[None, :, :, :]
        y = (lambda x, s, axes=(-2,-1): torch.fft.irfft2(x, s=s, dim=axes).to(torch.bfloat16))(y_f, (1, L), axes=(1, 2))[:, 0, :S, :]
        y = y + kv * ssm_D[None, None, :]
        return q * y

    def _B_ref(x, w1, w2):
        h = torch.einsum("bsd,df->bsf", x, w1)
        zero = torch.zeros_like(h)
        h = torch.maximum(h, zero)
        return torch.einsum("bsf,fd->bsd", h, w2)

    x = A_q
    x = x + _A_ref(_layernorm(x, axis=-1), A_k, A_v, A_shift_k, A_ssm_k, A_ssm_D)
    x = x + _B_ref(_layernorm(x, axis=-1), B_w1, B_w2)
    x = x + _A_ref(_layernorm(x, axis=-1), A_k, A_v, A_shift_k, A_ssm_k, A_ssm_D)
    x = x + _B_ref(_layernorm(x, axis=-1), B_w1, B_w2)
    return x
```

```python
from emit import *

S_, D_, F_ = 2048, 640, 1728
KN = "interleave_layers__ssm_conv_h3__dense_activation_relu__prompt_kernel"

CTRL = 0x0000000
KVT  = 0x0010000
QQ   = KVT + 0x280000
YQ   = QQ + 0x280000
X1Q  = YQ + 0x280000
X3Q  = X1Q + 0x280000
ST0  = X3Q + 0x280000
CS   = ST0 + 0x4000
PST1 = CS + 0x2000
PST2 = PST1 + 2 * 64 * 20 * 256
W1P  = PST2 + 64 * 16 * 256
W2P  = W1P + 16 * 140 * 1024
H1Q  = W2P + 8 * 270 * 1024
H2Q  = H1Q + 64 * 108 * 1024
WS_END = H2Q + 64 * 108 * 1024
assert all(x % 128 == 0 for x in (KVT, QQ, YQ, X1Q, X3Q, ST0, CS, PST1, PST2, W1P, W2P, H1Q, H2Q))

C_KV   = 0
C_Q    = 10
C_W1   = 14
C_W2   = 15
C_CONV = 17
C_ST1  = 33
C_H    = 97
C_ST2  = 113
C_X3   = 177
N_CNT  = 193

P_Q, P_K, P_V, P_SK, P_SSM, P_D, P_X, P_W1, P_W2, P_OUT, P_DBG, P_WS = [36 + 2 * i for i in range(12)]
WS = 8
SA, SB, SC, SD = 12, 16, 20, 24
S_WAVE = 60
S_WG = 61

def srd(A, dst, ptr, nbytes):
    A(f"""s_mov_b32 s{dst}, s{ptr}
    s_mov_b32 s{dst+1}, s{ptr+1}
    s_mov_b32 s{dst+2}, {nbytes}
    s_mov_b32 s{dst+3}, 0x20000""")

def prologue(A, nwg=256, exit_label="L_exit"):
    A(f"""s_cmp_ge_u32 s2, {nwg}
    s_cbranch_scc1 {exit_label}
    s_load_dwordx16 s[36:51], s[0:1], 0
    s_load_dwordx8 s[52:59], s[0:1], 64
    v_lshrrev_b32 v3, 6, v0
    v_and_b32 v1, 63, v0
    v_readfirstlane_b32 s{S_WAVE}, v3
    v_lshlrev_b32 v2, 4, v1
    s_mov_b32 s{S_WG}, s2
    s_waitcnt lgkmcnt(0)""")
    srd(A, WS, P_WS, 0x10000000)

def head(label):
    return f""".text
.globl {label}
.p2align 8
.type {label},@function
{label}:
"""

def desc(label, vgpr=512, accum=256, sgpr=102):
    return f"""
.section .rodata,"a"
.p2align 6
.amdhsa_kernel {label}
  .amdhsa_next_free_vgpr {vgpr}
  .amdhsa_next_free_sgpr {sgpr}
  .amdhsa_accum_offset {accum}
  .amdhsa_group_segment_fixed_size 0
  .amdhsa_kernarg_size 96
  .amdhsa_user_sgpr_count 2
  .amdhsa_user_sgpr_kernarg_segment_ptr 1
  .amdhsa_system_sgpr_workgroup_id_x 1
  .amdhsa_float_denorm_mode_32 3
.end_amdhsa_kernel
.text
"""

def signal(A, cnt_sreg_or_idx, per_wave=False):
    A("s_waitcnt vmcnt(0)")
    if not per_wave:
        A("s_barrier")
    lab = A.newlabel("sig")
    if not per_wave:
        A(f"s_cmp_lg_u32 s{S_WAVE}, 0\ns_cbranch_scc1 {lab}")
    A("s_mov_b64 s[98:99], exec\ns_mov_b64 exec, 1")
    if isinstance(cnt_sreg_or_idx, int):
        A(f"v_mov_b32 v4, {CTRL + cnt_sreg_or_idx * 128}")
    else:
        A(f"v_mov_b32 v4, {cnt_sreg_or_idx}")
    A(f"""v_mov_b32 v5, 1
    buffer_atomic_add v5, v4, s[{WS}:{WS+3}], 0 offen
    s_mov_b64 exec, s[98:99]""")
    if not per_wave:
        A.label(lab)

SPIN_MAX = 1 << 22

def wait_counters(A, first, n, target, vt=4, only_wave0=True, barrier=True):
    lab = A.newlabel("w"); done = A.newlabel("wd"); skip = A.newlabel("ws")
    if only_wave0:
        A(f"s_cmp_lg_u32 s{S_WAVE}, 0\ns_cbranch_scc1 {skip}")
    A(f"s_mov_b64 s[98:99], exec\ns_mov_b64 exec, {(1 << n) - 1 if n <= 32 else -1}" if n <= 6 else
      f"s_mov_b64 s[98:99], exec\ns_mov_b32 exec_lo, {hex((1 << n) - 1)}\ns_mov_b32 exec_hi, 0")
    A(f"v_lshlrev_b32 v{vt}, 7, v1")
    if isinstance(first, int):
        A(f"v_add_u32 v{vt}, {CTRL + first * 128}, v{vt}")
    else:
        A(f"v_add_u32 v{vt}, {first}, v{vt}")
    tgt = target if isinstance(target, str) else str(target)
    A(f"s_mov_b32 s97, {SPIN_MAX}")
    A.label(lab)
    A(f"""buffer_load_dword v{vt+1}, v{vt}, s[{WS}:{WS+3}], 0 offen sc1
    s_waitcnt vmcnt(0)
    v_cmp_gt_u32 vcc, {tgt}, v{vt+1}
    s_nop 1
    s_cbranch_vccz {done}
    s_sub_u32 s97, s97, 1
    s_cmp_eq_u32 s97, 0
    s_cbranch_scc1 {done}
    s_sleep 1
    s_branch {lab}""")
    A.label(done)
    A("s_mov_b64 exec, s[98:99]")
    if only_wave0:
        A.label(skip)
    if barrier:
        A("s_barrier")
```

```python
from common import *

TK_CS = 4160
TK_WS = 4 * TK_CS
TK = 18432
U_S = 4576
U = TK + 4 * TK_WS
CONV_LDS_END = U + 4 * U_S
SSM = 200

def conv_issue_ssm(A):
    srd(A, SD, P_SSM, D_ * S_ * 2)
    A(f"""s_lshl_b32 s68, s{S_WG}, 2
    s_add_u32 s68, s68, s{S_WAVE}          ; channel d
    s_lshl_b32 s69, s68, 12""")
    for r in range(4):
        for x in range(3):
            A(f"buffer_load_dwordx4 v[{SSM+12*r+4*x}:{SSM+12*r+4*x+3}], v2, s[{SD}:{SD+3}], s69 offen offset:{1024*r+4*x}")
    A(f"""s_lshl_b32 s70, s68, 1
    s_and_b32 s70, s70, 0xfffffffc
    s_add_u32 s72, s{P_D}, s70
    s_addc_u32 s73, s{P_D+1}, 0
    s_load_dword s71, s[72:73], 0""")

def conv_build(A, pending_after):
    A(f"""s_mul_i32 s72, s{S_WAVE}, {TK_WS}
    s_add_u32 s72, s72, {TK}
    v_add_u32 v6, s72, v2""")
    if pending_after is not None:
        A(f"s_waitcnt vmcnt({pending_after})")
    T = 16
    for r in range(4):
        L0, L1, L2 = SSM + 12 * r, SSM + 12 * r + 4, SSM + 12 * r + 8
        for i in range(4):
            A(f"v_alignbit_b32 v{T+i}, v{L1+i}, v{L0+i}, 16")
        for i in range(4):
            A(f"v_alignbit_b32 v{T+4+i}, v{L2+i}, v{L1+i}, 16")
        off = 32 + 1024 * r
        A(f"""ds_write_b128 v6, v[{L0}:{L0+3}] offset:{off}
        ds_write_b128 v6, v[{T}:{T+3}] offset:{off + TK_CS}
        ds_write_b128 v6, v[{L1}:{L1+3}] offset:{off + 2*TK_CS}
        ds_write_b128 v6, v[{T+4}:{T+7}] offset:{off + 3*TK_CS}""")
        T = 40 - T
    d0, d1 = SSM, SSM + 1
    A(f"""v_mov_b32 v32, 0
    v_mov_b32 v33, 0
    v_mov_b32 v34, 0
    v_mov_b32 v35, 0
    v_mov_b32 v36, 0
    v_mov_b32 v37, 0
    v_mov_b32 v38, 0
    v_lshlrev_b32 v39, 16, v{d0}
    v_mov_b32 v40, 0
    v_mov_b32 v41, 0
    v_mov_b32 v42, 0
    v_mov_b32 v43, v{d0}
    v_mov_b32 v44, 0
    v_mov_b32 v45, 0
    v_lshlrev_b32 v46, 16, v{d0}
    v_alignbit_b32 v47, v{d1}, v{d0}, 16
    s_mov_b64 s[98:99], exec
    s_mov_b64 exec, 1""")
    for sg in range(4):
        A(f"ds_write_b128 v6, v[32:35] offset:{sg*TK_CS}")
        A(f"ds_write_b128 v6, v[{32+4*sg}:{35+4*sg}] offset:{sg*TK_CS + 16}")
    A(f"""s_mov_b64 exec, 0x3fffffff
    s_mul_i32 s72, s{S_WAVE}, {U_S}
    s_add_u32 s72, s72, {U + 4096}
    v_add_u32 v7, s72, v2
    ds_write_b128 v7, v[32:35]
    s_mov_b64 exec, s[98:99]""")

def conv_load_u(A):
    A(f"""s_lshl_b32 s72, s{S_WG}, 14
    s_add_u32 s72, s72, {KVT}
    v_lshlrev_b32 v6, 4, v0""")
    for i in range(4):
        A(f"buffer_load_dwordx4 v[{16+4*i}:{19+4*i}], v6, s[{WS}:{WS+3}], s72 offen sc1\ns_add_u32 s72, s72, 4096")
    A(f"""v_and_b32 v7, 3, v0
    v_mul_u32_u24 v7, {U_S}, v7
    v_lshrrev_b32 v8, 2, v0
    v_lshl_add_u32 v7, v8, 4, v7
    v_add_u32 v7, {U}, v7""")
    for i in range(4):
        A(f"s_waitcnt vmcnt({3-i})\nds_write_b128 v7, v[{16+4*i}:{19+4*i}] offset:{1024*i}")
    A("s_waitcnt lgkmcnt(0)\ns_barrier")

ACC = 16
FA = [48, 80]
FB = [112, 144]
VA, VB = 8, 9

def conv_main(A):
    A(f"""v_and_b32 v6, 15, v1
    v_lshrrev_b32 v7, 4, v1
    v_lshl_add_u32 v10, v7, 3, v6
    v_add_u32 v10, 1, v10
    v_and_b32 v11, 3, v10
    v_mul_u32_u24 v11, {TK_CS}, v11
    v_lshrrev_b32 v10, 2, v10
    v_lshl_add_u32 v11, v10, 3, v11
    s_mul_i32 s72, s{S_WAVE}, {TK_WS}
    s_add_u32 s72, s72, {TK}
    v_add_u32 v{VA}, s72, v11
    v_lshlrev_b32 v10, 5, v6
    v_lshlrev_b32 v11, 4, v7
    v_sub_u32 v11, v11, v10
    s_mul_i32 s72, s{S_WAVE}, {U_S}
    s_add_u32 s72, s72, {U + 480}
    v_add_u32 v{VB}, s72, v11""")
    for i in range(32):
        A(f"v_mov_b32 v{ACC+i}, 0")
    def reads(setidx, r):
        out = []
        for x in range(8):
            out.append(f"ds_read_b64 v[{FA[setidx]+4*x}:{FA[setidx]+4*x+1}], v{VA} offset:{64*r + 512*x}")
            out.append(f"ds_read_b64 v[{FA[setidx]+4*x+2}:{FA[setidx]+4*x+3}], v{VA} offset:{64*r + 512*x + 8}")
            out.append(f"ds_read_b128 v[{FB[setidx]+4*x}:{FB[setidx]+4*x+3}], v{VB} offset:{64*r + 512*(7-x)}")
        return out
    for ln in reads(0, 0):
        A(ln)
    for r in range(8):
        cur = r & 1
        nxt = reads(1 - cur, r + 1) if r < 7 else []
        A("s_waitcnt lgkmcnt(0)")
        k = 0
        for a_ in range(8):
            for b in range(8 - a_):
                n = a_ + b
                A(f"v_mfma_f32_16x16x32_bf16 v[{ACC+4*n}:{ACC+4*n+3}], v[{FA[cur]+4*a_}:{FA[cur]+4*a_+3}], v[{FB[cur]+4*b}:{FB[cur]+4*b+3}], v[{ACC+4*n}:{ACC+4*n+3}]")
                if k < len(nxt):
                    A(nxt[k])
                k += 1

def conv_epilogue_loads(A):
    A(f"""v_lshrrev_b32 v10, 4, v1
    v_mul_u32_u24 v10, {40*1024}, v10
    v_and_b32 v11, 15, v1
    v_lshl_add_u32 v12, v11, 4, v10
    s_lshr_b32 s72, s{S_WG}, 2               ; nb
    s_and_b32 s73, s{S_WG}, 3                ; g
    s_lshl_b32 s72, s72, 10
    s_lshl_b32 s73, s73, 8
    s_add_u32 s72, s72, s73
    s_mul_i32 s73, s{S_WAVE}, {16*40*1024}   ; G = 4w + i -> rb32 = 4G
    s_add_u32 s74, s72, s73
    s_add_u32 s72, s74, {QQ}
    s_lshl_b32 s73, s{S_WAVE}, 12
    s_add_u32 s73, s73, {ST0}""")
    for i in range(4):
        A(f"""buffer_load_dwordx4 v[{176+4*i}:{179+4*i}], v12, s[{WS}:{WS+3}], s72 offen sc1
        buffer_load_dwordx4 v[{192+4*i}:{195+4*i}], v2, s[{WS}:{WS+3}], s73 offen sc1
        s_add_u32 s72, s72, {4*40*1024}
        s_add_u32 s73, s73, 1024""")

def conv_epilogue(A):
    A(f"""s_waitcnt lgkmcnt(0)
    s_and_b32 s72, s68, 1
    s_lshl_b32 s72, s72, 4
    s_lshr_b32 s71, s71, s72
    s_lshl_b32 s71, s71, 16
    v_and_b32 v6, 15, v1                    ; c
    v_lshrrev_b32 v7, 4, v1                 ; g
    v_lshlrev_b32 v10, 5, v6
    v_lshl_add_u32 v10, v7, 3, v10          ; 32c + 8g
    s_mul_i32 s72, s{S_WAVE}, {U_S}
    s_add_u32 s72, s72, {U + 504}
    v_sub_u32 v10, s72, v10                 ; u address
    v_lshlrev_b32 v11, 4, v6
    v_lshl_add_u32 v11, v7, 2, v11          ; 16c + 4g
    s_mul_i32 s72, s{S_WAVE}, {TK_WS + 64}
    s_add_u32 s72, s72, {TK}
    v_add_u32 v11, s72, v11""")
    for n in range(8):
        A(f"ds_read_b64 v[{48+2*n}:{49+2*n}], v10 offset:{512*(7-n)}")
    for n in range(8):
        d0, d1 = 48 + 2 * n, 49 + 2 * n
        c = ACC + 4 * n
        A(f"""s_waitcnt lgkmcnt({7-n})
        v_and_b32 v64, 0xffff0000, v{d1}
        v_lshlrev_b32 v65, 16, v{d1}
        v_and_b32 v66, 0xffff0000, v{d0}
        v_lshlrev_b32 v67, 16, v{d0}
        v_fmac_f32 v{c}, s71, v64
        v_fmac_f32 v{c+1}, s71, v65
        v_fmac_f32 v{c+2}, s71, v66
        v_fmac_f32 v{c+3}, s71, v67
        v_cvt_pk_bf16_f32 v{68+2*n}, v{c}, v{c+2}
        v_cvt_pk_bf16_f32 v{69+2*n}, v{c+1}, v{c+3}""")
    for n in range(8):
        A(f"""ds_write_b32 v11, v{68+2*n} offset:{256*n}
        ds_write_b32 v11, v{69+2*n} offset:{256*n + 2048}""")
    A("s_waitcnt lgkmcnt(0)\ns_barrier")
    A(f"""v_bfe_u32 v10, v1, 2, 2
    v_mul_u32_u24 v10, {TK_WS + 64}, v10
    v_lshrrev_b32 v11, 4, v1
    v_lshl_add_u32 v10, v11, 5, v10
    v_and_b32 v11, 3, v1
    v_lshl_add_u32 v10, v11, 3, v10
    s_lshl_b32 s72, s{S_WAVE}, 9             ; G0 = 4w -> 128*G0 bytes
    s_add_u32 s72, s72, {TK}
    v_add_u32 v10, s72, v10""")
    for i in range(4):
        A(f"""ds_read_b64_tr_b16 v[{96+4*i}:{97+4*i}], v10 offset:{128*i}
        ds_read_b64_tr_b16 v[{98+4*i}:{99+4*i}], v10 offset:{128*i + 2048}""")
    A(f"""s_add_u32 s72, s74, {YQ}
    s_add_u32 s73, s74, {X1Q}""")
    for i in range(4):
        y = 96 + 4 * i; q = 176 + 4 * i; st = 192 + 4 * i; o = 128 + 4 * i
        A(f"s_waitcnt lgkmcnt({6-2*i})")
        if i == 0:
            A("s_waitcnt vmcnt(0)")
        A(f"buffer_store_dwordx4 v[{y}:{y+3}], v12, s[{WS}:{WS+3}], s72 offen sc1")
        A(f"""v_mul_f32 v64, v{st}, v{st+1}
        v_mul_f32 v65, v{st+2}, v{st+3}""")
        for h in range(2):
            r_, mr = st + 1 + 2 * h, 64 + h
            for d in range(2):
                yy, qq = y + 2 * h + d, q + 2 * h + d
                A(f"""v_lshlrev_b32 v66, 16, v{qq}
                v_and_b32 v67, 0xffff0000, v{qq}
                v_lshlrev_b32 v68, 16, v{yy}
                v_and_b32 v69, 0xffff0000, v{yy}
                v_fma_f32 v70, v66, v{r_}, -v{mr}
                v_fma_f32 v71, v67, v{r_}, -v{mr}
                v_fmac_f32 v66, v70, v68
                v_fmac_f32 v67, v71, v69
                v_cvt_pk_bf16_f32 v{o+2*h+d}, v66, v67""")
        A(f"""buffer_store_dwordx4 v[{o}:{o+3}], v12, s[{WS}:{WS+3}], s73 offen sc1
        s_add_u32 s72, s72, {4*40*1024}
        s_add_u32 s73, s73, {4*40*1024}""")
```

```python
import re

class Asm:
    def __init__(self):
        self.L = []
        self.uid = 0
    def __call__(self, text):
        for ln in text.strip("\n").split("\n"):
            ln = ln.strip()
            if not ln:
                continue
            if ln.endswith(":") or ln.startswith("."):
                self.L.append(ln)
            else:
                self.L.append("    " + ln)
    def label(self, name):
        self.L.append(name + ":")
    def newlabel(self, base):
        self.uid += 1
        return f"L_{base}_{self.uid}"
    def nop(self, n):
        while n > 0:
            k = min(n, 16)
            self(f"s_nop {k-1}")
            n -= k
    def text(self):
        return "\n".join(self.L) + "\n"

def v(n, c=1):
    return f"v{n}" if c == 1 else f"v[{n}:{n+c-1}]"
def a(n, c=1):
    return f"a{n}" if c == 1 else f"a[{n}:{n+c-1}]"
def s(n, c=1):
    return f"s{n}" if c == 1 else f"s[{n}:{n+c-1}]"

_REG = re.compile(r"\b([vas])(\d+)\b|\b([vas])\[(\d+):(\d+)\]|\b(vcc|exec|m0|scc)\b")
def regs_of(op):
    out = set()
    for m in _REG.finditer(op):
        if m.group(1):
            out.add((m.group(1), int(m.group(2))))
        elif m.group(3):
            for i in range(int(m.group(4)), int(m.group(5)) + 1):
                out.add((m.group(3), i))
        else:
            out.add((m.group(6), 0))
    return out

TRANS = ("v_exp_", "v_log_", "v_rcp_", "v_rsq_", "v_sqrt_", "v_sin_", "v_cos_")

class Ins:
    def __init__(self, line, idx):
        self.line = line; self.idx = idx
        t = line.split(";")[0].strip()
        parts = t.split(None, 1)
        self.op = parts[0]
        rest = parts[1] if len(parts) > 1 else ""
        ops = [x.strip() for x in re.split(r",\s*(?![^\[]*\])", rest)] if rest else []
        self.ops = ops
        op = self.op
        self.is_mfma = op.startswith("v_mfma")
        self.is_valu = op.startswith("v_") and not self.is_mfma
        self.is_vmem = op.startswith(("buffer_", "global_", "flat_"))
        self.is_ds = op.startswith("ds_")
        self.is_salu = op.startswith("s_")
        self.ws = 1
        if op == "s_nop":
            self.ws = int(ops[0], 0) + 1
        self.dst = set(); self.src = set()
        R = [regs_of(x) for x in ops]
        if self.is_mfma:
            self.dst = R[0]; self.A = R[1]; self.B = R[2]; self.C = R[3] if len(R) > 3 else set()
            self.src = self.A | self.B | self.C
        elif self.is_valu:
            if op.startswith("v_cmp"):
                self.dst = R[0]; self.src = set().union(*R[1:]) if len(R) > 1 else set()
                if op.startswith("v_cmpx"): self.dst = self.dst | {("exec", 0)}
            elif op.startswith(("v_swap", "v_permlane16_swap", "v_permlane32_swap")):
                self.dst = R[0] | R[1]; self.src = R[0] | R[1]
            elif op.startswith(("v_add_co", "v_addc_co", "v_sub_co", "v_subb_co", "v_subrev_co")):
                self.dst = R[0] | R[1]; self.src = set().union(*R[2:])
            else:
                self.dst = R[0] if R else set(); self.src = set().union(*R[1:]) if len(R) > 1 else set()
                if op.startswith(("v_fmac", "v_dot2c", "v_mac", "v_pk_fmac")) or "dpp" in line or op.startswith("v_writelane"):
                    self.src = self.src | self.dst
                if op.startswith("v_cndmask") and len(R) == 3:
                    self.src = self.src | {("vcc", 0)}
        elif self.is_vmem:
            lds = " lds" in (" " + t)
            if "atomic" in op:
                self.src = set().union(*R) if R else set()
                if "sc0" in t: self.dst = R[0]
            elif "load" in op and not lds:
                self.dst = R[0]; self.src = set().union(*R[1:]) if len(R) > 1 else set()
            elif "store" in op:
                self.src = set().union(*R) if R else set()
                self.data = R[0] if op.startswith("buffer_") else (R[1] if len(R) > 1 else set())
            else:
                self.src = set().union(*R) if R else set()
                if lds: self.src |= {("m0", 0)}
        elif self.is_ds:
            if op.startswith(("ds_read", "ds_bpermute", "ds_permute", "ds_swizzle")) or "_rtn" in op:
                self.dst = R[0]; self.src = set().union(*R[1:]) if len(R) > 1 else set()
            else:
                self.src = set().union(*R) if R else set()
        elif self.is_salu:
            if op.startswith(("s_cmp", "s_cbranch", "s_branch", "s_waitcnt", "s_barrier", "s_nop", "s_sleep", "s_endpgm", "s_setprio", "s_bitcmp")):
                self.src = set().union(*R) if R else set()
            else:
                self.dst = R[0] if R else set(); self.src = set().union(*R[1:]) if len(R) > 1 else set()
                if "saveexec" in op: self.dst = self.dst | {("exec", 0)}

def passes(op):
    if "32x32x16" in op or "32x32x8" in op: return 8
    if "16x16x32" in op or "16x16x16" in op: return 4
    raise ValueError(op)

def lint(text, window=24):
    ins = []
    for i, ln in enumerate(text.split("\n")):
        t = ln.split(";")[0].strip()
        if not t or t.endswith(":") or t.startswith("."):
            continue
        ins.append(Ins(ln, i + 1))
    probs = []
    def isv(r): return r[0] in ("v", "a")
    for j, c in enumerate(ins):
        dist = 0
        for k in range(j - 1, max(-1, j - window - 1), -1):
            p = ins[k]
            need = 0; why = ""
            if p.op in ("s_branch", "s_endpgm", "s_setpc_b64"):
                break
            pv = {r for r in p.dst if isv(r)}
            ps = {r for r in p.dst if r[0] == "s" or r[0] == "vcc"}
            if p.is_valu:
                if c.is_mfma and pv & c.src: need, why = 2, "VALU->MFMA"
                if c.op.startswith(("v_readlane", "v_readfirstlane")) and pv & c.src: need, why = max(need, 1), "VALU->readlane"
                if c.op.startswith("v_permlane") and pv & c.src: need, why = max(need, 2), "VALU->permlane"
                if "dpp" in c.line and c.is_valu and pv & c.src: need, why = max(need, 2), "VALU->DPP"
                if p.op.startswith(TRANS) and c.is_valu and pv & c.src and not c.op.startswith(TRANS): need, why = max(need, 1), "trans->VALU"
                if ps:
                    if c.is_vmem and ps & c.src: need, why = max(need, 5), "VALU sgpr->VMEM"
                    if c.is_valu and ps & c.src:
                        if c.op.startswith(("v_readlane", "v_writelane")): need, why = max(need, 4), "VALU sgpr->lane sel"
                        else: need, why = max(need, 2), "VALU sgpr->VALU"
                if p.op.startswith("v_dot2") and pv & (c.src | c.dst):
                    if c.op == p.op:
                        R = [regs_of(x) for x in c.ops]
                        if pv & (R[1] | R[2]): need, why = max(need, 3), "DOT->DOT A/B"
                    else: need, why = max(need, 3), "DOT->other"
                if ("exec", 0) in p.dst and (c.is_mfma): need, why = max(need, 4), "VALU exec->MFMA"
            if p.is_mfma:
                n = passes(p.op)
                d = p.dst
                if c.is_mfma:
                    if d & (c.A | c.B): need, why = max(need, {4: 8, 8: 12}[n]), "MFMA D->MFMA A/B"
                    if d & c.C and not (d == c.C and passes(c.op) == n): need, why = max(need, {4: 6, 8: 10}[n]), "MFMA D->MFMA C partial"
                    if d & c.dst and not d & c.C: need, why = max(need, {4: 8, 8: 12}[n]), "MFMA D WAW MFMA"
                elif (c.is_valu or c.is_vmem or c.is_ds):
                    if d & (c.src | c.dst): need, why = max(need, {4: 8, 8: 12}[n]), "MFMA D->VALU/VMEM/DS"
                    if c.is_valu and p.C & c.dst: need, why = max(need, {4: 3, 8: 7}[n]), "MFMA C WAR VALU"
            if p.is_vmem and "store" in p.op and ("x4" in p.op or "x3" in p.op):
                if hasattr(p, "data") and p.data & c.dst and (c.is_valu or c.is_mfma): need, why = max(need, 2), "store data WAR"
                elif hasattr(p, "data") and p.data & c.dst: need, why = max(need, 1), "store data WAR(any)"
            if p.is_salu and ("m0", 0) in p.dst and c.is_vmem and ("m0", 0) in c.src: need, why = max(need, 1), "M0->DMA"
            if p.is_salu and ("exec", 0) in p.dst and "dpp" in c.line and False: pass
            if need > dist:
                probs.append(f"line {c.idx}: '{c.line.strip()}' needs {need} ws after line {p.idx} '{p.line.strip()}' ({why}), has {dist}")
            dist += p.ws
            if dist >= 16: break
    return probs
```

```python
from common import *
from p0 import f2u

S_CL, S_CT, S_RT2, S_CT2 = 76, 77, 78, 79
S_X, S_H, S_LAYER = 80, 81, 82
S_RB = 83
S_RBO = 84
S_ODD = 85

RED = 143360

def ffn_ids(A):
    A(f"""s_and_b32 s62, s{S_WG}, 7              ; xcd
    s_lshr_b32 s63, s{S_WG}, 3               ; j
    s_lshr_b32 s64, s63, 4
    s_lshl_b32 s65, s62, 1
    s_add_u32 s{S_CL}, s65, s64
    s_and_b32 s{S_CT}, s63, 15
    s_lshr_b32 s64, s63, 3
    s_lshl_b32 s65, s62, 2
    s_add_u32 s{S_RT2}, s65, s64
    s_and_b32 s{S_CT2}, s63, 7
    s_lshl_b32 s64, s{S_CL}, 2
    s_add_u32 s{S_RB}, s64, s{S_WAVE}
    s_and_b32 s{S_ODD}, s{S_WAVE}, 1
    s_lshr_b32 s64, s{S_WAVE}, 1
    s_lshl_b32 s65, s{S_RT2}, 1
    s_add_u32 s{S_RBO}, s65, s64""")

def load_w1_lds(A):
    A(f"""s_mul_i32 s62, s{S_CT}, {140*1024}
    s_mul_i32 s63, s{S_WAVE}, {35*1024}
    s_add_u32 s62, s62, s63
    s_add_u32 s62, s62, {W1P}""")
    for i in range(35):
        if i % 4 == 0:
            if i:
                A(f"s_add_u32 s62, s62, 4096\ns_add_u32 s63, s63, 4096")
            A(f"s_mov_b32 m0, s63\ns_nop 0")
        A(f"buffer_load_dwordx4 v2, s[{WS}:{WS+3}], s62 offen offset:{1024*(i%4)} sc1 lds")

W2V = 232
def w2reg(f):
    return f"a[{4*f}:{4*f+3}]" if f < 64 else f"v[{W2V+4*(f-64)}:{W2V+4*(f-64)+3}]"

def w2_bases(A):
    A(f"""s_mul_i32 s62, s{S_WAVE}, 14
    s_cmp_ge_u32 s{S_WAVE}, 3
    s_cselect_b32 s63, 1, 0
    s_sub_u32 s62, s62, s63                  ; kb0 = 0,14,28,41
    s_mul_i32 s63, s{S_CT2}, 54
    s_add_u32 s62, s62, s63
    s_mul_i32 s62, s62, {5*1024}
    s_add_u32 s62, s62, {W2P}
    s_mul_i32 s63, s{S_ODD}, 3072
    s_add_u32 s86, s62, s63
    s_sub_u32 s63, 1, s{S_ODD}
    s_lshl_b32 s63, s63, 11
    s_add_u32 s87, s62, s63""")

def load_w2_regs(A, i0=0, i1=14):
    for i in range(i0, i1):
        for n in range(5):
            f = 5 * i + n
            sb, off = (86, 1024 * n) if n < 2 else (87, 1024 * (n - 2))
            A(f"buffer_load_dwordx4 {w2reg(f)}, v2, s[{WS}:{WS+3}], s{sb} offen offset:{off} sc1")
        A(f"s_add_u32 s86, s86, 5120\ns_add_u32 s87, s87, 5120")

G1_ACC, G1_W, G1_X = 16, [72, 100], 128
def g1_acc(p, n): return G1_ACC + 4 * (7 * p + n)

def red_g(A, regs, t):
    for r in regs:
        A(f"""v_mov_b32 v{t}, v{r}
        s_nop 1
        v_permlane32_swap_b32 v{r}, v{t}
        v_add_f32 v{r}, v{r}, v{t}
        v_mov_b32 v{t}, v{r}
        s_nop 1
        v_permlane16_swap_b32 v{r}, v{t}
        v_add_f32 v{r}, v{r}, v{t}""")

def g1_issue(A):
    A(f"""s_mul_i32 s88, s{S_RB}, {40*1024}
    s_add_u32 s88, s88, s{S_X}
    s_lshl_b32 s62, s{S_CT}, 11
    s_add_u32 s62, s62, s88
    buffer_load_dwordx4 v[208:211], v2, s[{WS}:{WS+3}], s62 offen sc1
    buffer_load_dwordx4 v[212:215], v2, s[{WS}:{WS+3}], s62 offen offset:1024 sc1
    s_add_u32 s62, s62, {16*2048}
    s_cmp_lt_u32 s{S_CT}, 4
    s_cselect_b32 s62, s62, s88
    buffer_load_dwordx4 v[216:219], v2, s[{WS}:{WS+3}], s62 offen sc1
    buffer_load_dwordx4 v[220:223], v2, s[{WS}:{WS+3}], s62 offen offset:1024 sc1""")
    for kk in range(10):
        x = G1_X + 8 * kk
        A(f"""buffer_load_dwordx4 v[{x}:{x+3}], v2, s[{WS}:{WS+3}], s88 offen sc1
        buffer_load_dwordx4 v[{x+4}:{x+7}], v2, s[{WS}:{WS+3}], s88 offen offset:1024 sc1
        s_add_u32 s88, s88, 2048""")

def g1_stats_publish(A):
    A("s_waitcnt vmcnt(20)\ns_mov_b32 s62, 0x3f803f80")
    def stat(base, o):
        A(f"v_mov_b32 v{o}, 0\nv_mov_b32 v{o+1}, 0\nv_mov_b32 v{o+2}, 0\nv_mov_b32 v{o+3}, 0")
        for blk in range(2):
            r = base + 4 * blk
            A(f"""v_dot2_f32_bf16 v{o}, v{r}, s62, v{o}
            v_dot2_f32_bf16 v{o+1}, v{r}, v{r}, v{o+1}
            v_dot2_f32_bf16 v{o+2}, v{r+2}, s62, v{o+2}
            v_dot2_f32_bf16 v{o+3}, v{r+2}, v{r+2}, v{o+3}
            v_dot2_f32_bf16 v{o}, v{r+1}, s62, v{o}
            v_dot2_f32_bf16 v{o+1}, v{r+1}, v{r+1}, v{o+1}
            v_dot2_f32_bf16 v{o+2}, v{r+3}, s62, v{o+2}
            v_dot2_f32_bf16 v{o+3}, v{r+3}, v{r+3}, v{o+3}""")
    stat(208, 224)
    stat(216, 228)
    red_g(A, [224, 225, 226, 227, 228, 229, 230, 231], 10)
    A(f"""s_mul_i32 s62, s{S_LAYER}, {64*20*256}
    s_mul_i32 s63, s{S_RB}, {20*256}
    s_add_u32 s62, s62, s63
    s_add_u32 s89, s62, {PST1}
    s_lshl_b32 s63, s{S_CT}, 8
    s_add_u32 s62, s89, s63
    s_mov_b64 s[98:99], exec
    s_mov_b64 exec, 0xffff
    buffer_store_dwordx4 v[224:227], v2, s[{WS}:{WS+3}], s62 offen sc1
    s_add_u32 s62, s62, {16*256}
    s_cmp_lt_u32 s{S_CT}, 4
    s_cselect_b32 s62, s62, {PST1 - 256}
    buffer_store_dwordx4 v[228:231], v2, s[{WS}:{WS+3}], s62 offen sc1
    s_mov_b64 exec, s[98:99]""")

SIGK = 14
def g1_main(A, signal_stats=True):
    A(f"""v_mov_b32 v3, v2
    v_add_u32 v4, {9*7168}, v2
    v_add_u32 v5, {18*7168}, v2""")
    def wreads(kk):
        out = []
        base, o = (3, kk) if kk < 9 else ((4, kk - 9) if kk < 18 else (5, kk - 18))
        for n in range(7):
            r = G1_W[kk & 1] + 4 * n
            out.append(f"ds_read_b128 v[{r}:{r+3}], v{base} offset:{o*7168 + 1024*n}")
        return out
    for ln in wreads(0): A(ln)
    for kk in range(20):
        x = G1_X + 8 * (kk % 10)
        if kk < 10: cnt = 18
        elif kk < SIGK or not signal_stats: cnt = 2 * (19 - kk)
        elif kk == SIGK: cnt = 0
        else: cnt = None
        if cnt is not None: A(f"s_waitcnt vmcnt({cnt})")
        if kk == SIGK and signal_stats:
            A(f"""s_lshl_b32 s62, s{S_RB}, 7
            s_add_u32 s62, s62, {CTRL + C_ST1*128}
            s_mov_b64 s[98:99], exec
            s_mov_b64 exec, 1
            v_mov_b32 v6, s62
            v_mov_b32 v7, 1
            buffer_atomic_add v7, v6, s[{WS}:{WS+3}], 0 offen
            s_mov_b64 exec, s[98:99]""")
        A(f"v_swap_b32 v{x+2}, v{x+4}\nv_swap_b32 v{x+3}, v{x+5}")
        A("s_waitcnt lgkmcnt(0)\ns_nop 0")
        nxt = wreads(kk + 1) if kk < 19 else []
        k = 0
        for n in range(7):
            for p in range(2):
                w = G1_W[kk & 1] + 4 * n
                c = g1_acc(p, n)
                cin = "0" if kk == 0 else f"v[{c}:{c+3}]"
                A(f"v_mfma_f32_16x16x32_bf16 v[{c}:{c+3}], v[{w}:{w+3}], v[{x+4*p}:{x+4*p+3}], {cin}")
                if k < len(nxt): A(nxt[k])
                k += 1
        if kk < 10:
            A(f"""buffer_load_dwordx4 v[{x}:{x+3}], v2, s[{WS}:{WS+3}], s88 offen sc1
            buffer_load_dwordx4 v[{x+4}:{x+7}], v2, s[{WS}:{WS+3}], s88 offen offset:1024 sc1
            s_add_u32 s88, s88, 2048""")

def gather_stats(A, base_sreg, nm, out, n_elems):
    A(f"""v_and_b32 v6, 15, v1
    v_lshrrev_b32 v7, 4, v1
    v_lshlrev_b32 v7, 8, v7
    v_lshl_add_u32 v6, v6, 4, v7
    s_add_u32 s63, s{base_sreg}, 4096""")
    T = 100
    for m in range(nm):
        if m < 4: A(f"buffer_load_dwordx4 v[{T+4*m}:{T+4*m+3}], v6, s[{WS}:{WS+3}], s{base_sreg} offen offset:{1024*m} sc1")
        else: A(f"buffer_load_dwordx4 v[{T+4*m}:{T+4*m+3}], v6, s[{WS}:{WS+3}], s63 offen sc1")
    A("s_waitcnt vmcnt(0)")
    for m in range(1, nm):
        for c in range(4):
            A(f"v_add_f32 v{T+c}, v{T+c}, v{T+4*m+c}")
    red_g(A, [T, T + 1, T + 2, T + 3], 10)
    inv = hex(f2u(1.0 / n_elems)); eps = hex(f2u(1e-5))
    for h in range(2):
        sm, sq = T + 2 * h, T + 2 * h + 1
        A(f"""v_mul_f32 v{out+2*h}, {inv}, v{sm}
        v_mul_f32 v{sq}, {inv}, v{sq}
        v_fma_f32 v{sq}, -v{out+2*h}, v{out+2*h}, v{sq}
        v_max_f32 v{sq}, 0, v{sq}
        v_add_f32 v{sq}, {eps}, v{sq}
        v_rsq_f32 v{out+2*h+1}, v{sq}""")

def g1_epilogue(A, wait_stats=True):
    A(f"""v_lshrrev_b32 v8, 4, v1
    v_lshlrev_b32 v8, 4, v8
    s_mul_i32 s62, s{S_CT}, 448
    s_add_u32 s62, s62, {CS}""")
    for n in range(7):
        A(f"buffer_load_dwordx4 v[{72+4*n}:{75+4*n}], v8, s[{WS}:{WS+3}], s62 offen offset:{64*n} sc1")
    if wait_stats:
        A(f"""s_lshl_b32 s64, s{S_RB}, 7
        s_add_u32 s64, s64, {CTRL + C_ST1*128}
        s_add_u32 s65, s{S_LAYER}, 1
        s_lshl_b32 s65, s65, 4""")
        wait_counters(A, "s64", 1, "s65", vt=6, only_wave0=False, barrier=False)
    gather_stats(A, 89, 5, 124, 640)
    A(f"""s_mul_i32 s62, s{S_RB}, {108*1024}
    s_mul_i32 s63, s{S_CT}, {7*1024}
    s_add_u32 s62, s62, s63
    s_add_u32 s62, s62, s{S_H}""")
    lab = A.newlabel("g1skip")
    for n in range(7):
        if n == 3:
            A(f"s_cmp_eq_u32 s{S_CT}, 15\ns_cbranch_scc1 {lab}")
        o = 128 + 4 * n
        for p in range(2):
            c = g1_acc(p, n); mu, r = 124 + 2 * p, 125 + 2 * p
            for d in range(2):
                A(f"""v_pk_fma_f32 v[{c+2*d}:{c+2*d+1}], v[{72+4*n+2*d}:{72+4*n+2*d+1}], v[{mu}:{mu+1}], v[{c+2*d}:{c+2*d+1}] op_sel_hi:[1,0,1] neg_lo:[0,1,0] neg_hi:[0,1,0]
                v_pk_mul_f32 v[{c+2*d}:{c+2*d+1}], v[{c+2*d}:{c+2*d+1}], v[{mu}:{mu+1}] op_sel:[0,1] op_sel_hi:[1,1]
                v_cvt_pk_bf16_f32 v{o+2*p+d}, v{c+2*d}, v{c+2*d+1}
                v_pk_max_i16 v{o+2*p+d}, v{o+2*p+d}, 0""")
        A(f"buffer_store_dwordx4 v[{o}:{o+3}], v2, s[{WS}:{WS+3}], s62 offen offset:{1024*(n%4)} sc1")
        if n == 3: A("s_add_u32 s62, s62, 4096")
    A.label(lab)

G2_ACC, G2_H = 16, 96
def g2_acc(rb, p, n): return G2_ACC + 4 * (10 * rb + 2 * n + p)

def g2_issue(A):
    A(f"""s_mul_i32 s62, s{S_WAVE}, 14
    s_cmp_ge_u32 s{S_WAVE}, 3
    s_cselect_b32 s63, 1, 0
    s_sub_u32 s62, s62, s63                  ; kb0
    s_lshl_b32 s62, s62, 11
    s_add_u32 s62, s62, s{S_H}
    s_mul_i32 s63, s{S_RBO}, {108*1024}
    s_add_u32 s90, s62, s63
    s_xor_b32 s63, s{S_RBO}, 1
    s_mul_i32 s63, s63, {108*1024}
    s_add_u32 s91, s62, s63""")
    for i in range(6):
        g2_loads(A, i)

def g2_loads(A, i):
    h = G2_H + 16 * (i % 6)
    A(f"""buffer_load_dwordx4 v[{h}:{h+3}], v2, s[{WS}:{WS+3}], s90 offen sc1
    buffer_load_dwordx4 v[{h+4}:{h+7}], v2, s[{WS}:{WS+3}], s90 offen offset:1024 sc1
    buffer_load_dwordx4 v[{h+8}:{h+11}], v2, s[{WS}:{WS+3}], s91 offen sc1
    buffer_load_dwordx4 v[{h+12}:{h+15}], v2, s[{WS}:{WS+3}], s91 offen offset:1024 sc1
    s_add_u32 s90, s90, 2048
    s_add_u32 s91, s91, 2048""")

def g2_main(A, extra_young=0):
    lab = A.newlabel("g2end")
    for i in range(14):
        h = G2_H + 16 * (i % 6)
        if i < 6: cnt = 4 * (5 - i) + extra_young + 4 * i
        else: cnt = 4 * min(5, 13 - i)
        if i == 13:
            A(f"s_cmp_ge_u32 s{S_WAVE}, 2\ns_cbranch_scc1 {lab}")
        A(f"s_waitcnt vmcnt({cnt})")
        A(f"""v_swap_b32 v{h+2}, v{h+4}
        v_swap_b32 v{h+3}, v{h+5}
        v_swap_b32 v{h+10}, v{h+12}
        v_swap_b32 v{h+11}, v{h+13}
        s_nop 0""")
        for n in range(5):
            for rb in range(2):
                for p in range(2):
                    c = g2_acc(rb, p, n)
                    cin = "0" if i == 0 else f"v[{c}:{c+3}]"
                    A(f"v_mfma_f32_16x16x32_bf16 v[{c}:{c+3}], {w2reg(5*i+n)}, v[{h+8*rb+4*p}:{h+8*rb+4*p+3}], {cin}")
        if i + 6 < 14:
            g2_loads(A, i + 6)
    A.label(lab)
    A("s_waitcnt vmcnt(0)")

def g2_reduce(A):
    A(f"""s_lshr_b32 s62, s{S_WAVE}, 1
    s_mul_i32 s63, s62, {5*2048}
    s_xor_b32 s62, s62, 1
    s_mul_i32 s64, s62, {5*2048}
    s_mul_i32 s65, s{S_ODD}, {3*2048}
    s_sub_u32 s66, 1, s{S_ODD}
    s_lshl_b32 s66, s66, 12                  ; even: 2*2048
    s_add_u32 s62, s63, s65
    s_add_u32 s62, s62, {RED}
    v_add_u32 v3, s62, v2
    s_add_u32 s62, s63, s66
    s_add_u32 s62, s62, {RED}
    v_add_u32 v4, s62, v2
    s_add_u32 s62, s64, s65
    s_add_u32 s62, s62, {RED}
    v_add_u32 v5, s62, v2
    s_add_u32 s62, s64, s66
    s_add_u32 s62, s62, {RED}
    v_add_u32 v6, s62, v2
    s_nop 3""")
    def wr(rb, n):
        base = (3 if rb == 0 else 5) + (0 if n < 2 else 1)
        off = 2048 * (n if n < 2 else n - 2)
        c = g2_acc(rb, 0, n)
        A(f"ds_write_b128 v{base}, v[{c}:{c+3}] offset:{off}\nds_write_b128 v{base}, v[{c+4}:{c+7}] offset:{off+1024}")
    T = 96
    for t in (1, 2, 3):
        rb = 0 if t == 1 else 1
        l1 = A.newlabel("rw")
        if t == 2:
            wr(rb, 0); wr(rb, 1)
            A(f"s_cmp_eq_u32 s{S_ODD}, 1\ns_cbranch_scc1 {l1}")
            wr(rb, 2)
        else:
            wr(rb, 3); wr(rb, 4)
            A(f"s_cmp_eq_u32 s{S_ODD}, 0\ns_cbranch_scc1 {l1}")
            wr(rb, 2)
        A.label(l1)
        A("s_waitcnt lgkmcnt(0)\ns_barrier")
        l2 = A.newlabel("rr")
        for n in range(3):
            if n == 2:
                A(f"s_cmp_eq_u32 s{S_ODD}, 1\ns_cbranch_scc1 {l2}")
            base = 3 if n < 2 else 4
            off = 2048 * (n if n < 2 else 0)
            A(f"ds_read_b128 v[{T+8*n}:{T+8*n+3}], v{base} offset:{off}\nds_read_b128 v[{T+8*n+4}:{T+8*n+7}], v{base} offset:{off+1024}")
            A("s_waitcnt lgkmcnt(0)")
            c = g2_acc(0, 0, n)
            for x in range(0, 8, 2):
                A(f"v_pk_add_f32 v[{c+x}:{c+x+1}], v[{c+x}:{c+x+1}], v[{T+8*n+x}:{T+8*n+x+1}]")
        A.label(l2)
        if t < 3:
            A("s_barrier")

def g2_res_issue(A, with_y):
    A(f"""s_mul_i32 s62, s{S_RBO}, 40
    s_mul_i32 s63, s{S_CT2}, 5
    s_add_u32 s62, s62, s63
    s_mul_i32 s63, s{S_ODD}, 3
    s_add_u32 s62, s62, s63
    s_lshl_b32 s92, s62, 10
    s_add_u32 s62, s92, s{S_X}""")
    for n in range(3):
        A(f"buffer_load_dwordx4 v[{192+4*n}:{195+4*n}], v2, s[{WS}:{WS+3}], s62 offen offset:{1024*n} sc1")
    if with_y:
        A(f"s_add_u32 s62, s92, {YQ}")
        for n in range(3):
            A(f"buffer_load_dwordx4 v[{204+4*n}:{207+4*n}], v2, s[{WS}:{WS+3}], s62 offen offset:{1024*n} sc1")
    return 6 if with_y else 3

def g2_add_residual(A):
    for n in range(3):
        c = g2_acc(0, 0, n); x = 192 + 4 * n
        for h in range(2):
            for d in range(2):
                A(f"""v_lshlrev_b32 v8, 16, v{x+2*h+d}
                v_and_b32 v9, 0xffff0000, v{x+2*h+d}
                v_pk_add_f32 v[{c+4*h+2*d}:{c+4*h+2*d+1}], v[{c+4*h+2*d}:{c+4*h+2*d+1}], v[8:9]""")

def g2_epilogue_mid(A, sync_stats=True):
    g2_add_residual(A)
    A("v_mov_b32 v100, 0\nv_mov_b32 v101, 0\nv_mov_b32 v102, 0\nv_mov_b32 v103, 0")
    lab = A.newlabel("ps")
    for n in range(3):
        if n == 2: A(f"s_cmp_eq_u32 s{S_ODD}, 1\ns_cbranch_scc1 {lab}")
        c = g2_acc(0, 0, n)
        for h in range(2):
            for x in range(4):
                A(f"v_add_f32 v{100+2*h}, v{100+2*h}, v{c+4*h+x}\nv_fmac_f32 v{101+2*h}, v{c+4*h+x}, v{c+4*h+x}")
    A.label(lab)
    red_g(A, [100, 101, 102, 103], 10)
    A(f"""s_lshl_b32 s62, s{S_RBO}, 12
    s_add_u32 s93, s62, {PST2}
    s_lshl_b32 s62, s{S_CT2}, 1
    s_add_u32 s62, s62, s{S_ODD}
    s_lshl_b32 s62, s62, 8
    s_add_u32 s62, s62, s93
    s_mov_b64 s[98:99], exec
    s_mov_b64 exec, 0xffff
    buffer_store_dwordx4 v[100:103], v2, s[{WS}:{WS+3}], s62 offen sc1
    s_mov_b64 exec, s[98:99]""")
    if sync_stats:
        A(f"""s_lshl_b32 s64, s{S_RBO}, 7
        s_add_u32 s64, s64, {CTRL + C_ST2*128}""")
        signal(A, "s64", per_wave=True)
        wait_counters(A, "s64", 1, 16, vt=6, only_wave0=False, barrier=False)
    gather_stats(A, 93, 4, 124, 640)
    A(f"""v_mul_f32 v122, v124, v125
    v_mul_f32 v123, v126, v127
    s_add_u32 s62, s92, {X3Q}""")
    lab = A.newlabel("x3")
    for n in range(3):
        if n == 2: A(f"s_cmp_eq_u32 s{S_ODD}, 1\ns_cbranch_scc1 {lab}")
        c = g2_acc(0, 0, n); y = 204 + 4 * n; o = 128 + 4 * n
        for h in range(2):
            r_, mr = 125 + 2 * h, 122 + h
            for d in range(2):
                e = c + 4 * h + 2 * d
                A(f"""v_lshlrev_b32 v8, 16, v{y+2*h+d}
                v_and_b32 v9, 0xffff0000, v{y+2*h+d}
                v_fma_f32 v10, v{e}, v{r_}, -v{mr}
                v_fma_f32 v11, v{e+1}, v{r_}, -v{mr}
                v_fmac_f32 v{e}, v10, v8
                v_fmac_f32 v{e+1}, v11, v9
                v_cvt_pk_bf16_f32 v{o+2*h+d}, v{e}, v{e+1}""")
        A(f"buffer_store_dwordx4 v[{o}:{o+3}], v2, s[{WS}:{WS+3}], s62 offen offset:{1024*n} sc1")
    A.label(lab)

def g2_epilogue_out(A):
    g2_add_residual(A)
    srd(A, SA, P_OUT, S_ * D_ * 2)
    A(f"""v_and_b32 v6, 15, v1
    v_mul_u32_u24 v6, 2560, v6
    v_lshrrev_b32 v7, 4, v1
    v_lshl_add_u32 v6, v7, 3, v6
    s_mul_i32 s62, s{S_RBO}, {32*1280}
    s_mul_i32 s63, s{S_CT2}, 160
    s_add_u32 s62, s62, s63
    s_mul_i32 s63, s{S_ODD}, 96
    s_add_u32 s62, s62, s63""")
    lab = A.newlabel("out")
    for n in range(3):
        if n == 2: A(f"s_cmp_eq_u32 s{S_ODD}, 1\ns_cbranch_scc1 {lab}")
        c = g2_acc(0, 0, n); o = 128 + 4 * n
        for h in range(2):
            for d in range(2):
                A(f"v_cvt_pk_bf16_f32 v{o+2*h+d}, v{c+4*h+2*d}, v{c+4*h+2*d+1}")
        A(f"""buffer_store_dwordx2 v[{o}:{o+1}], v6, s[{SA}:{SA+3}], s62 offen offset:{32*n}
        buffer_store_dwordx2 v[{o+2}:{o+3}], v6, s[{SA}:{SA+3}], s62 offen offset:{32*n + 1280}""")
    A.label(lab)
```

```python
from common import *

P0_RS = 144
P0_LDS = 0

def p0_kv_issue(A):
    srd(A, SA, P_K, S_ * D_ * 2)
    srd(A, SB, P_V, S_ * D_ * 2)
    srd(A, SC, P_SK, D_ * 8)
    A(f"""s_lshr_b32 s62, s{S_WG}, 4          ; cg
    s_and_b32 s63, s{S_WG}, 15             ; tb
    s_mul_i32 s64, s63, {128 * 1280}
    s_lshl_b32 s65, s62, 7
    s_add_u32 s64, s64, s65
    v_and_b32 v6, 7, v0                    ; chunk
    v_lshrrev_b32 v7, 3, v0                ; rg
    v_mul_u32_u24 v8, 5120, v7
    v_lshl_add_u32 v8, v6, 4, v8
    v_add_u32 v8, s64, v8
    v_subrev_u32 v9, 3840, v8
    v_subrev_u32 v10, 2560, v8
    v_subrev_u32 v11, 1280, v8
    s_lshl_b32 s65, s62, 9                 ; cg*512
    v_lshlrev_b32 v12, 6, v6
    v_add_u32 v12, s65, v12
    buffer_load_dwordx4 v[16:19], v9, s[{SA}:{SA+3}], 0 offen
    buffer_load_dwordx4 v[20:23], v10, s[{SA}:{SA+3}], 0 offen
    buffer_load_dwordx4 v[24:27], v11, s[{SA}:{SA+3}], 0 offen""")
    for i in range(4):
        A(f"buffer_load_dwordx4 v[{28+4*i}:{31+4*i}], v8, s[{SA}:{SA+3}], 0 offen offset:{1280*i}")
    for i in range(4):
        A(f"buffer_load_dwordx4 v[{44+4*i}:{47+4*i}], v8, s[{SB}:{SB+3}], 0 offen offset:{1280*i}")
    for i in range(4):
        A(f"buffer_load_dwordx4 v[{60+4*i}:{63+4*i}], v12, s[{SC}:{SC+3}], 0 offen offset:{16*i}")

def p0_kv_compute(A, pending_after):
    W = 80
    K = 112
    V = 168
    T = 32
    A(f"s_waitcnt vmcnt({pending_after})")
    for c in range(8):
        d0 = 60 + 2 * c; d1 = d0 + 1
        A(f"""v_lshlrev_b32 v{W+0*8+c}, 16, v{d0}
        v_and_b32 v{W+1*8+c}, 0xffff0000, v{d0}
        v_lshlrev_b32 v{W+2*8+c}, 16, v{d1}
        v_and_b32 v{W+3*8+c}, 0xffff0000, v{d1}""")
    for r in range(7):
        for d in range(4):
            A(f"""v_lshlrev_b32 v{K+8*r+2*d}, 16, v{16+4*r+d}
            v_and_b32 v{K+8*r+2*d+1}, 0xffff0000, v{16+4*r+d}""")
    for r in range(4):
        for d in range(4):
            A(f"""v_lshlrev_b32 v{V+8*r+2*d}, 16, v{44+4*r+d}
            v_and_b32 v{V+8*r+2*d+1}, 0xffff0000, v{44+4*r+d}""")
    A(f"""v_lshlrev_b32 v13, 2, v7
    v_sub_u32 v13, 127, v13
    v_mul_u32_u24 v13, {P0_RS}, v13
    v_lshl_add_u32 v13, v6, 4, v13
    v_add_u32 v13, {P0_LDS - 3 * P0_RS}, v13""")
    for i in range(4):
        for d in range(4):
            t = T + 2 * d
            A(f"v_pk_mul_f32 v[{t}:{t+1}], v[{W+2*d}:{W+2*d+1}], v[{K+8*(i+3)+2*d}:{K+8*(i+3)+2*d+1}]")
        for j in range(1, 4):
            for d in range(4):
                t = T + 2 * d
                A(f"v_pk_fma_f32 v[{t}:{t+1}], v[{W+8*j+2*d}:{W+8*j+2*d+1}], v[{K+8*(i+3-j)+2*d}:{K+8*(i+3-j)+2*d+1}], v[{t}:{t+1}]")
        for d in range(4):
            t = T + 2 * d
            A(f"v_pk_mul_f32 v[{t}:{t+1}], v[{t}:{t+1}], v[{V+8*i+2*d}:{V+8*i+2*d+1}]")
        o = 16 + 4 * i
        for d in range(4):
            t = T + 2 * d
            A(f"v_cvt_pk_bf16_f32 v{o+d}, v{t}, v{t+1}")
        A(f"ds_write_b128 v13, v[{o}:{o+3}] offset:{(3-i)*P0_RS}")
    A("s_waitcnt lgkmcnt(0)\ns_barrier")
    A(f"""v_lshrrev_b32 v6, 4, v1
    v_lshlrev_b32 v6, 5, v6
    v_and_b32 v7, 3, v1
    v_lshl_add_u32 v6, v7, 3, v6
    v_bfe_u32 v7, v1, 2, 2
    v_add_u32 v6, v6, v7
    v_mul_u32_u24 v6, {P0_RS}, v6
    s_lshl_b32 s65, s{S_WAVE}, 5
    s_add_u32 s65, s65, {P0_LDS}
    v_add_u32 v6, s65, v6""")
    for qq in range(4):
        A(f"""ds_read_b64_tr_b16 v[{16+4*qq}:{17+4*qq}], v6 offset:{8*qq}
        ds_read_b64_tr_b16 v[{18+4*qq}:{19+4*qq}], v6 offset:{8*qq + 4*P0_RS}""")
    A(f"""s_lshl_b32 s65, s62, 4
    s_lshl_b32 s66, s{S_WAVE}, 2
    s_add_u32 s65, s65, s66
    s_lshl_b32 s65, s65, 14
    s_sub_u32 s66, 15, s63
    s_lshl_b32 s66, s66, 10
    s_add_u32 s65, s65, s66
    s_add_u32 s65, s65, {KVT}""")
    for qq in range(4):
        A(f"""s_waitcnt lgkmcnt({6 - 2*qq})
        buffer_store_dwordx4 v[{16+4*qq}:{19+4*qq}], v2, s[{WS}:{WS+3}], s65 offen sc1
        s_add_u32 s65, s65, 16384""")

QT_RS = 1280 + 16
def task_q(A):
    srd(A, SA, P_Q, S_ * D_ * 2)
    A(f"""s_sub_u32 s62, s{S_WG}, 160           ; rb32
    s_mul_i32 s63, s62, {32*1280}""")
    A(f"v_lshlrev_b32 v6, 4, v0")
    for i in range(10):
        A(f"buffer_load_dwordx4 v[{16+4*i}:{19+4*i}], v6, s[{SA}:{SA+3}], s63 offen offset:0" if i == 0 else
          f"s_add_u32 s64, s63, {4096*i}\nbuffer_load_dwordx4 v[{16+4*i}:{19+4*i}], v6, s[{SA}:{SA+3}], s64 offen")
    A("s_mov_b32 s64, 0x3333334")
    for i in range(10):
        A(f"""v_add_u32 v7, {256*i}, v0
        v_mul_hi_u32 v8, v7, s64           ; row
        v_add_u32 v8, v8, v7
        v_lshlrev_b32 v{60+i}, 4, v8""")
    for i in range(10):
        A(f"s_waitcnt vmcnt({9-i})\nds_write_b128 v{60+i}, v[{16+4*i}:{19+4*i}]")
    A("s_waitcnt lgkmcnt(0)\ns_barrier")
    A(f"""v_and_b32 v6, 15, v1
    v_lshrrev_b32 v7, 4, v1
    v_mul_u32_u24 v8, {2*QT_RS}, v6
    v_lshl_add_u32 v8, v7, 3, v8
    s_mul_i32 s64, s{S_WAVE}, 320
    v_add_u32 v8, s64, v8""")
    for n in range(10):
        A(f"""ds_read_b64 v[{16+4*n}:{17+4*n}], v8 offset:{32*n}
        ds_read_b64 v[{18+4*n}:{19+4*n}], v8 offset:{32*n + QT_RS}""")
    A(f"""s_mul_i32 s64, s62, 40
    s_mul_i32 s65, s{S_WAVE}, 10
    s_add_u32 s64, s64, s65
    s_lshl_b32 s64, s64, 10
    s_add_u32 s64, s64, {QQ}""")
    A("s_waitcnt lgkmcnt(0)")
    for n in range(10):
        A(f"""buffer_store_dwordx4 v[{16+4*n}:{19+4*n}], v2, s[{WS}:{WS+3}], s64 offen sc1
        s_add_u32 s64, s64, 1024""")
    for n in range(10):
        for d in range(2):
            A(f"""v_lshlrev_b32 v{64+4*n+2*d}, 16, v{16+4*n+d}
            v_and_b32 v{65+4*n+2*d}, 0xffff0000, v{16+4*n+d}
            v_lshlrev_b32 v{104+4*n+2*d}, 16, v{18+4*n+d}
            v_and_b32 v{105+4*n+2*d}, 0xffff0000, v{18+4*n+d}""")
    def reduce_lanes_waves(e, o, ldsbase):
        for r in (e, o):
            A(f"""v_mov_b32 v10, v{r}
            s_nop 1
            v_permlane32_swap_b32 v{r}, v10
            v_add_f32 v{r}, v{r}, v10
            v_mov_b32 v10, v{r}
            s_nop 1
            v_permlane16_swap_b32 v{r}, v10
            v_add_f32 v{r}, v{r}, v10""")
        A(f"""v_and_b32 v10, 15, v1
        v_lshlrev_b32 v10, 3, v10
        s_lshl_b32 s65, s{S_WAVE}, 7
        v_add_u32 v11, s65, v10
        v_mov_b32 v12, v{e}
        v_mov_b32 v13, v{o}
        ds_write_b64 v11, v[12:13] offset:{ldsbase}
        s_waitcnt lgkmcnt(0)
        s_barrier""")
        for w in range(4):
            A(f"ds_read_b64 v[{150+2*w}:{151+2*w}], v10 offset:{ldsbase + 128*w}")
        A(f"""s_waitcnt lgkmcnt(0)
        v_add_f32 v{e}, v150, v152
        v_add_f32 v{o}, v151, v153
        v_add_f32 v{e}, v{e}, v154
        v_add_f32 v{o}, v{o}, v155
        v_add_f32 v{e}, v{e}, v156
        v_add_f32 v{o}, v{o}, v157""")
    RB = 32 * QT_RS
    A("v_mov_b32 v144, 0\nv_mov_b32 v145, 0")
    for x in range(40):
        A(f"v_add_f32 v144, v144, v{64+x}\nv_add_f32 v145, v145, v{104+x}")
    reduce_lanes_waves(144, 145, RB)
    A(f"""v_mul_f32 v144, {hex(f2u(1/640))}, v144
    v_mul_f32 v145, {hex(f2u(1/640))}, v145
    v_mov_b32 v146, 0
    v_mov_b32 v147, 0""")
    for x in range(40):
        A(f"""v_sub_f32 v10, v{64+x}, v144
        v_sub_f32 v11, v{104+x}, v145
        v_fmac_f32 v146, v10, v10
        v_fmac_f32 v147, v11, v11""")
    reduce_lanes_waves(146, 147, RB + 512)
    A(f"""v_mov_b32 v10, {hex(f2u(1e-5))}
    v_fmac_f32 v10, {hex(f2u(1/640))}, v146
    v_mov_b32 v11, {hex(f2u(1e-5))}
    v_fmac_f32 v11, {hex(f2u(1/640))}, v147
    v_rsq_f32 v10, v10
    v_rsq_f32 v11, v11
    v_mov_b32 v148, v144
    v_mov_b32 v150, v145
    v_mov_b32 v149, v10
    v_mov_b32 v151, v11""")
    lab = A.newlabel("qst")
    A(f"""s_cmp_lg_u32 s{S_WAVE}, 0
    s_cbranch_scc1 {lab}
    s_lshl_b32 s64, s62, 8
    s_add_u32 s64, s64, {ST0}
    s_mov_b64 s[98:99], exec
    s_mov_b64 exec, 0xffff
    buffer_store_dwordx4 v[148:151], v2, s[{WS}:{WS+3}], s64 offen sc1
    s_mov_b64 exec, s[98:99]""")
    A.label(lab)

import struct
def f2u(x):
    return struct.unpack("<I", struct.pack("<f", x))[0]

def task_w2(A, kb_sreg):
    srd(A, SA, P_W2, F_ * D_ * 2)
    A(f"""s_mul_i32 s63, s{kb_sreg}, {32*1280}
    v_lshlrev_b32 v6, 4, v0""")
    for i in range(10):
        A(f"s_add_u32 s64, s63, {4096*i}\nbuffer_load_dwordx4 v[{16+4*i}:{19+4*i}], v6, s[{SA}:{SA+3}], s64 offen")
    A("s_mov_b32 s64, 0x3333334")
    for i in range(10):
        A(f"""v_add_u32 v7, {256*i}, v0
        v_mul_hi_u32 v8, v7, s64
        v_add_u32 v8, v8, v7
        v_lshlrev_b32 v{60+i}, 4, v8""")
    A("s_barrier")
    for i in range(10):
        A(f"s_waitcnt vmcnt({9-i})\nds_write_b128 v{60+i}, v[{16+4*i}:{19+4*i}]")
    A("s_waitcnt lgkmcnt(0)\ns_barrier")
    A(f"""v_lshrrev_b32 v6, 4, v1
    v_lshlrev_b32 v6, 2, v6
    v_bfe_u32 v7, v1, 2, 2
    v_add_u32 v6, v6, v7
    v_mul_u32_u24 v6, {QT_RS}, v6
    v_and_b32 v7, 3, v1
    v_lshl_add_u32 v6, v7, 3, v6
    s_mul_i32 s64, s{S_WAVE}, 320
    v_add_u32 v6, s64, v6""")
    for n in range(10):
        A(f"""ds_read_b64_tr_b16 v[{16+4*n}:{17+4*n}], v6 offset:{32*n}
        ds_read_b64_tr_b16 v[{18+4*n}:{19+4*n}], v6 offset:{32*n + 16*QT_RS}""")
    A(f"""s_lshl_b32 s64, s{S_WAVE}, 1
    s_mul_i32 s64, s64, 54
    s_add_u32 s64, s64, s{kb_sreg}
    s_mul_i32 s64, s64, {5*1024}
    s_add_u32 s64, s64, {W2P}""")
    for n in range(10):
        if n == 5:
            A(f"s_add_u32 s64, s64, {54*5*1024 - 5*1024}")
        A(f"""s_waitcnt lgkmcnt({min(15, 18 - 2*n)})
        buffer_store_dwordx4 v[{16+4*n}:{19+4*n}], v2, s[{WS}:{WS+3}], s64 offen sc1
        s_add_u32 s64, s64, 1024""")

W1_RS = 128 + 16
def task_w1(A, t_sreg):
    srd(A, SA, P_W1, D_ * F_ * 2)
    A(f"""v_lshrrev_b32 v6, 3, v0
    v_and_b32 v7, 7, v0
    v_mul_u32_u24 v8, {F_*2}, v6
    v_lshl_add_u32 v8, v7, 4, v8
    s_lshl_b32 s63, s{t_sreg}, 7
    v_mul_u32_u24 v9, {W1_RS}, v6
    v_lshl_add_u32 v9, v7, 4, v9""")
    for i in range(20):
        A(f"buffer_load_dwordx4 v[{16+4*i}:{19+4*i}], v8, s[{SA}:{SA+3}], s63 offen\ns_add_u32 s63, s63, {32*F_*2}")
    for i in range(20):
        A(f"s_waitcnt vmcnt({19-i})\nds_write_b128 v9, v[{16+4*i}:{19+4*i}] offset:{(32*W1_RS*i) % 65536 if False else 0}" if False else
          f"s_waitcnt vmcnt({19-i})\nds_write_b128 v9, v[{16+4*i}:{19+4*i}]\nv_add_u32 v9, {32*W1_RS}, v9")
    A("s_waitcnt lgkmcnt(0)\ns_barrier")
    A(f"""v_lshrrev_b32 v6, 4, v1
    v_lshlrev_b32 v6, 2, v6
    v_bfe_u32 v7, v1, 2, 2
    v_add_u32 v6, v6, v7
    v_mul_u32_u24 v6, {W1_RS}, v6
    v_and_b32 v7, 3, v1
    v_lshl_add_u32 v6, v7, 3, v6
    s_lshl_b32 s64, s{S_WAVE}, 5
    v_add_u32 v6, s64, v6""")
    A(f"""s_lshl_b32 s64, s{t_sreg}, 2
    s_add_u32 s64, s64, s{S_WAVE}           ; nb
    s_mul_i32 s65, s64, 9363
    s_lshr_b32 s65, s65, 16
    s_mul_i32 s66, s65, 7
    s_sub_u32 s66, s64, s66                 ; nbl
    s_mul_i32 s65, s65, 140
    s_add_u32 s65, s65, s66
    s_lshl_b32 s65, s65, 10
    s_add_u32 s65, s65, {W1P}""")
    A("v_mov_b32 v100, 0x3f803f80\nv_mov_b32 v101, 0x3f803f80\nv_mov_b32 v102, 0x3f803f80\nv_mov_b32 v103, 0x3f803f80")
    A("v_mov_b32 v104, 0\nv_mov_b32 v105, 0\nv_mov_b32 v106, 0\nv_mov_b32 v107, 0")
    for kb in range(20):
        A(f"""ds_read_b64_tr_b16 v[{16+4*kb}:{17+4*kb}], v6
        ds_read_b64_tr_b16 v[{18+4*kb}:{19+4*kb}], v6 offset:{16*W1_RS}
        v_add_u32 v6, {32*W1_RS}, v6""")
        if kb >= 4:
            k2 = kb - 4
            A(f"""s_waitcnt lgkmcnt(8)
            buffer_store_dwordx4 v[{16+4*k2}:{19+4*k2}], v2, s[{WS}:{WS+3}], s65 offen sc1
            s_add_u32 s65, s65, {7*1024}
            v_mfma_f32_16x16x32_bf16 v[104:107], v[{16+4*k2}:{19+4*k2}], v[100:103], v[104:107]""")
    A("s_waitcnt lgkmcnt(0)")
    for k2 in range(16, 20):
        A(f"""buffer_store_dwordx4 v[{16+4*k2}:{19+4*k2}], v2, s[{WS}:{WS+3}], s65 offen sc1
        s_add_u32 s65, s65, {7*1024}
        v_mfma_f32_16x16x32_bf16 v[104:107], v[{16+4*k2}:{19+4*k2}], v[100:103], v[104:107]""")
    A(f"""s_lshl_b32 s64, s64, 6
    s_add_u32 s64, s64, {CS}
    v_lshrrev_b32 v6, 4, v1
    v_lshlrev_b32 v6, 4, v6
    v_and_b32 v7, 15, v1
    v_cmp_eq_u32 vcc, 0, v7
    s_nop 4
    s_and_saveexec_b64 s[98:99], vcc
    buffer_store_dwordx4 v[104:107], v6, s[{WS}:{WS+3}], s64 offen sc1
    s_mov_b64 exec, s[98:99]""")
```

```python
import sys
from common import *
import p0, conv, gemm

TARGET = '.amdgcn_target "amdgcn-amd-amdhsa--gfx950"\n'

def zero_ctrl(A):
    A("""v_mov_b32 v8, 0
    v_mov_b32 v9, 0
    v_mov_b32 v10, 0
    v_mov_b32 v11, 0
    v_lshlrev_b32 v6, 4, v0""")
    n = (N_CNT * 128 + 4095) // 4096
    for i in range(n):
        A(f"s_mov_b32 s62, {CTRL + 4096*i}\nbuffer_store_dwordx4 v[8:11], v6, s[{WS}:{WS+3}], s62 offen sc1")

def k_prep(A, label="prep_kernel"):
    A.L.append(head(label))
    prologue(A, 256, "L_prep_exit")
    A(f"""s_cmp_ge_u32 s{S_WG}, 160
    s_cbranch_scc1 L_prep_B""")
    p0.p0_kv_issue(A)
    p0.p0_kv_compute(A, 0)
    A("s_branch L_prep_exit")
    A.label("L_prep_B")
    A(f"""s_cmp_ge_u32 s{S_WG}, 224
    s_cbranch_scc1 L_prep_w1""")
    p0.task_q(A)
    A(f"""s_sub_u32 s67, s{S_WG}, 160
    s_cmp_ge_u32 s67, 54
    s_cbranch_scc1 L_prep_exit""")
    p0.task_w2(A, 67)
    A("s_branch L_prep_exit")
    A.label("L_prep_w1")
    A(f"""s_sub_u32 s67, s{S_WG}, 224
    s_cmp_lt_u32 s67, 27
    s_cbranch_scc1 L_prep_w1go
    s_cmp_lg_u32 s{S_WG}, 255
    s_cbranch_scc1 L_prep_exit""")
    zero_ctrl(A)
    A("s_branch L_prep_exit")
    A.label("L_prep_w1go")
    p0.task_w1(A, 67)
    A.label("L_prep_exit")
    A("s_endpgm")
    A.L.append(desc(label))

def k_conv(A, label="conv_kernel"):
    A.L.append(head(label))
    prologue(A, 160, "L_conv_exit")
    conv.conv_issue_ssm(A)
    conv.conv_build(A, 0)
    conv.conv_load_u(A)
    conv.conv_epilogue_loads(A)
    conv.conv_main(A)
    conv.conv_epilogue(A)
    A.label("L_conv_exit")
    A("s_endpgm")
    A.L.append(desc(label))

def k_g1(A, layer, label):
    A.L.append(head(label))
    ex = f"L_{label}_exit"
    prologue(A, 256, ex)
    gemm.ffn_ids(A)
    A(f"""s_mov_b32 s{gemm.S_LAYER}, {layer}
    s_mov_b32 s{gemm.S_X}, {X1Q if layer == 0 else X3Q}
    s_mov_b32 s{gemm.S_H}, {H1Q if layer == 0 else H2Q}""")
    gemm.load_w1_lds(A)
    A("s_waitcnt vmcnt(0)")
    gemm.g1_issue(A)
    gemm.g1_stats_publish(A)
    A("s_barrier")
    gemm.g1_main(A)
    gemm.g1_epilogue(A)
    A.label(ex)
    A("s_endpgm")
    A.L.append(desc(label))

def k_g2(A, layer, label):
    A.L.append(head(label))
    ex = f"L_{label}_exit"
    prologue(A, 256, ex)
    gemm.ffn_ids(A)
    A(f"""s_mov_b32 s{gemm.S_LAYER}, {layer}
    s_mov_b32 s{gemm.S_X}, {X1Q if layer == 0 else X3Q}
    s_mov_b32 s{gemm.S_H}, {H1Q if layer == 0 else H2Q}""")
    gemm.w2_bases(A)
    gemm.load_w2_regs(A, 0, 7)
    A("s_waitcnt vmcnt(20)")
    gemm.load_w2_regs(A, 7, 14)
    A("s_waitcnt vmcnt(0)")
    gemm.g2_issue(A)
    n = gemm.g2_res_issue(A, layer == 0)
    gemm.g2_main(A, n)
    gemm.g2_reduce(A)
    if layer == 0:
        gemm.g2_epilogue_mid(A)
    else:
        gemm.g2_epilogue_out(A)
    A.label(ex)
    A("s_endpgm")
    A.L.append(desc(label))

def finish(A, launches):
    hdr = "".join(f"; @launch kernel={k} grid=({g},1,1) block=(256,1,1) lds={l}\n" for k, g, l in launches)
    txt = hdr + TARGET + A.text()
    probs = lint(txt)
    for p in probs: print("LINT:", p)
    return txt

if __name__ == "__main__":
    A = Asm()
    k_prep(A)
    k_conv(A)
    k_g1(A, 0, "g1a_kernel"); k_g2(A, 0, "g2a_kernel"); k_g1(A, 1, "g1b_kernel"); k_g2(A, 1, "g2b_kernel")
    L = 163840
    txt = finish(A, [("prep_kernel", 256, L), ("conv_kernel", 160, L), ("g1a_kernel", 256, L), ("g2a_kernel", 256, L), ("g1b_kernel", 256, L), ("g2b_kernel", 256, L)])
    open(sys.argv[1] if len(sys.argv) > 1 else "multi.s", "w").write(txt)
```

```python
from emit import *

S_, D_, F_ = 2048, 640, 1728
KN = "interleave_layers__ssm_conv_h3__dense_activation_relu__prompt_kernel"

CTRL = 0x0000000
KVT  = 0x0010000
QQ   = KVT + 0x280000
YQ   = QQ + 0x280000
X1Q  = YQ + 0x280000
X3Q  = X1Q + 0x280000
ST0  = X3Q + 0x280000
CS   = ST0 + 0x4000
PST1 = CS + 0x2000
PST2 = PST1 + 2 * 64 * 20 * 256
W1P  = PST2 + 64 * 16 * 256
W2P  = W1P + 16 * 140 * 1024
H1Q  = W2P + 8 * 270 * 1024
H2Q  = H1Q + 64 * 108 * 1024
WS_END = H2Q + 64 * 108 * 1024
assert all(x % 128 == 0 for x in (KVT, QQ, YQ, X1Q, X3Q, ST0, CS, PST1, PST2, W1P, W2P, H1Q, H2Q))

C_KV   = 0
C_Q    = 10
C_W1   = 14
C_W2   = 15
C_CONV = 17
C_ST1  = 33
C_H    = 97
C_ST2  = 113
C_X3   = 177
N_CNT  = 193

P_Q, P_K, P_V, P_SK, P_SSM, P_D, P_X, P_W1, P_W2, P_OUT, P_DBG, P_WS = [36 + 2 * i for i in range(12)]
WS = 8
SA, SB, SC, SD = 12, 16, 20, 24
S_WAVE = 60
S_WG = 61

def srd(A, dst, ptr, nbytes):
    A(f"""s_mov_b32 s{dst}, s{ptr}
    s_mov_b32 s{dst+1}, s{ptr+1}
    s_mov_b32 s{dst+2}, {nbytes}
    s_mov_b32 s{dst+3}, 0x20000""")

def prologue(A, nwg=256, exit_label="L_exit"):
    A(f"""s_cmp_ge_u32 s2, {nwg}
    s_cbranch_scc1 {exit_label}
    s_load_dwordx16 s[36:51], s[0:1], 0
    s_load_dwordx8 s[52:59], s[0:1], 64
    v_lshrrev_b32 v3, 6, v0
    v_and_b32 v1, 63, v0
    v_readfirstlane_b32 s{S_WAVE}, v3
    v_lshlrev_b32 v2, 4, v1
    s_mov_b32 s{S_WG}, s2
    s_waitcnt lgkmcnt(0)""")
    srd(A, WS, P_WS, 0x10000000)

def head(label):
    return f""".text
.globl {label}
.p2align 8
.type {label},@function
{label}:
"""

def desc(label, vgpr=512, accum=256, sgpr=102):
    return f"""
.section .rodata,"a"
.p2align 6
.amdhsa_kernel {label}
  .amdhsa_next_free_vgpr {vgpr}
  .amdhsa_next_free_sgpr {sgpr}
  .amdhsa_accum_offset {accum}
  .amdhsa_group_segment_fixed_size 0
  .amdhsa_kernarg_size 96
  .amdhsa_user_sgpr_count 2
  .amdhsa_user_sgpr_kernarg_segment_ptr 1
  .amdhsa_system_sgpr_workgroup_id_x 1
  .amdhsa_float_denorm_mode_32 3
.end_amdhsa_kernel
.text
"""

def signal(A, cnt_sreg_or_idx, per_wave=False):
    A("s_waitcnt vmcnt(0)")
    if not per_wave:
        A("s_barrier")
    lab = A.newlabel("sig")
    if not per_wave:
        A(f"s_cmp_lg_u32 s{S_WAVE}, 0\ns_cbranch_scc1 {lab}")
    A("s_mov_b64 s[98:99], exec\ns_mov_b64 exec, 1")
    if isinstance(cnt_sreg_or_idx, int):
        A(f"v_mov_b32 v4, {CTRL + cnt_sreg_or_idx * 128}")
    else:
        A(f"v_mov_b32 v4, {cnt_sreg_or_idx}")
    A(f"""v_mov_b32 v5, 1
    buffer_atomic_add v5, v4, s[{WS}:{WS+3}], 0 offen
    s_mov_b64 exec, s[98:99]""")
    if not per_wave:
        A.label(lab)

SPIN_MAX = 1 << 22

def wait_counters(A, first, n, target, vt=4, only_wave0=True, barrier=True):
    lab = A.newlabel("w"); done = A.newlabel("wd"); skip = A.newlabel("ws")
    if only_wave0:
        A(f"s_cmp_lg_u32 s{S_WAVE}, 0\ns_cbranch_scc1 {skip}")
    A(f"s_mov_b64 s[98:99], exec\ns_mov_b64 exec, {(1 << n) - 1 if n <= 32 else -1}" if n <= 6 else
      f"s_mov_b64 s[98:99], exec\ns_mov_b32 exec_lo, {hex((1 << n) - 1)}\ns_mov_b32 exec_hi, 0")
    A(f"v_lshlrev_b32 v{vt}, 7, v1")
    if isinstance(first, int):
        A(f"v_add_u32 v{vt}, {CTRL + first * 128}, v{vt}")
    else:
        A(f"v_add_u32 v{vt}, {first}, v{vt}")
    tgt = target if isinstance(target, str) else str(target)
    A(f"s_mov_b32 s97, {SPIN_MAX}")
    A.label(lab)
    A(f"""buffer_load_dword v{vt+1}, v{vt}, s[{WS}:{WS+3}], 0 offen sc1
    s_waitcnt vmcnt(0)
    v_cmp_gt_u32 vcc, {tgt}, v{vt+1}
    s_nop 1
    s_cbranch_vccz {done}
    s_sub_u32 s97, s97, 1
    s_cmp_eq_u32 s97, 0
    s_cbranch_scc1 {done}
    s_sleep 1
    s_branch {lab}""")
    A.label(done)
    A("s_mov_b64 exec, s[98:99]")
    if only_wave0:
        A.label(skip)
    if barrier:
        A("s_barrier")

STAMPS = 0x3000000
STAMP_ON = [False]
def stamp(A, i):
    if not STAMP_ON[0]: return
    lab = A.newlabel("st")
    A(f"""s_cmp_lg_u32 s{S_WAVE}, 0
    s_cbranch_scc1 {lab}
    s_memrealtime s[94:95]
    s_memtime s[100:101]
    s_lshl_b32 s96, s{S_WG}, 8
    s_add_u32 s96, s96, {STAMPS + 8*i}
    s_waitcnt lgkmcnt(0)
    s_mov_b64 s[98:99], exec
    s_mov_b64 exec, 1
    v_mov_b32 v14, s94
    v_mov_b32 v15, s100
    v_mov_b32 v13, 0
    buffer_store_dwordx2 v[14:15], v13, s[{WS}:{WS+3}], s96 offen
    s_mov_b64 exec, s[98:99]""")
    A.label(lab)
```

```python
from common import *
from p0 import f2u

S_CL, S_CT, S_RT2, S_CT2 = 76, 77, 78, 79
S_X, S_H, S_LAYER = 80, 81, 82
S_RB = 83
S_RBO = 84
S_ODD = 85

RED = 143360

def ffn_ids(A):
    A(f"""s_and_b32 s62, s{S_WG}, 7              ; xcd
    s_lshr_b32 s63, s{S_WG}, 3               ; j
    s_lshr_b32 s64, s63, 4
    s_lshl_b32 s65, s62, 1
    s_add_u32 s{S_CL}, s65, s64
    s_and_b32 s{S_CT}, s63, 15
    s_lshr_b32 s64, s63, 3
    s_lshl_b32 s65, s62, 2
    s_add_u32 s{S_RT2}, s65, s64
    s_and_b32 s{S_CT2}, s63, 7
    s_lshl_b32 s64, s{S_CL}, 2
    s_add_u32 s{S_RB}, s64, s{S_WAVE}
    s_and_b32 s{S_ODD}, s{S_WAVE}, 1
    s_lshr_b32 s64, s{S_WAVE}, 1
    s_lshl_b32 s65, s{S_RT2}, 1
    s_add_u32 s{S_RBO}, s65, s64""")

def load_w1_lds(A):
    A(f"""s_mul_i32 s62, s{S_CT}, {140*1024}
    s_mul_i32 s63, s{S_WAVE}, {35*1024}
    s_add_u32 s62, s62, s63
    s_add_u32 s62, s62, {W1P}""")
    for i in range(35):
        if i % 4 == 0:
            if i:
                A(f"s_add_u32 s62, s62, 4096\ns_add_u32 s63, s63, 4096")
            A(f"s_mov_b32 m0, s63\ns_nop 0")
        A(f"buffer_load_dwordx4 v2, s[{WS}:{WS+3}], s62 offen offset:{1024*(i%4)} sc1 lds")

W2V = 232
def w2reg(f):
    return f"a[{4*f}:{4*f+3}]" if f < 64 else f"v[{W2V+4*(f-64)}:{W2V+4*(f-64)+3}]"

def w2_bases(A):
    A(f"""s_mul_i32 s62, s{S_WAVE}, 14
    s_cmp_ge_u32 s{S_WAVE}, 3
    s_cselect_b32 s63, 1, 0
    s_sub_u32 s62, s62, s63                  ; kb0 = 0,14,28,41
    s_mul_i32 s63, s{S_CT2}, 54
    s_add_u32 s62, s62, s63
    s_mul_i32 s62, s62, {5*1024}
    s_add_u32 s62, s62, {W2P}
    s_mul_i32 s63, s{S_ODD}, 3072
    s_add_u32 s86, s62, s63
    s_sub_u32 s63, 1, s{S_ODD}
    s_lshl_b32 s63, s63, 11
    s_add_u32 s87, s62, s63""")

def load_w2_regs(A, i0=0, i1=14):
    for i in range(i0, i1):
        for n in range(5):
            f = 5 * i + n
            sb, off = (86, 1024 * n) if n < 2 else (87, 1024 * (n - 2))
            A(f"buffer_load_dwordx4 {w2reg(f)}, v2, s[{WS}:{WS+3}], s{sb} offen offset:{off} sc1")
        A(f"s_add_u32 s86, s86, 5120\ns_add_u32 s87, s87, 5120")

G1_ACC, G1_W, G1_X = 16, [72, 100], 128
def g1_acc(p, n): return G1_ACC + 4 * (7 * p + n)

def red_g(A, regs, t):
    for r in regs:
        A(f"""v_mov_b32 v{t}, v{r}
        s_nop 1
        v_permlane32_swap_b32 v{r}, v{t}
        v_add_f32 v{r}, v{r}, v{t}
        v_mov_b32 v{t}, v{r}
        s_nop 1
        v_permlane16_swap_b32 v{r}, v{t}
        v_add_f32 v{r}, v{r}, v{t}""")

def g1_issue(A):
    A(f"""s_mul_i32 s88, s{S_RB}, {40*1024}
    s_add_u32 s88, s88, s{S_X}
    s_lshl_b32 s62, s{S_CT}, 11
    s_add_u32 s62, s62, s88
    buffer_load_dwordx4 v[208:211], v2, s[{WS}:{WS+3}], s62 offen sc1
    buffer_load_dwordx4 v[212:215], v2, s[{WS}:{WS+3}], s62 offen offset:1024 sc1
    s_add_u32 s62, s62, {16*2048}
    s_cmp_lt_u32 s{S_CT}, 4
    s_cselect_b32 s62, s62, s88
    buffer_load_dwordx4 v[216:219], v2, s[{WS}:{WS+3}], s62 offen sc1
    buffer_load_dwordx4 v[220:223], v2, s[{WS}:{WS+3}], s62 offen offset:1024 sc1""")
    for kk in range(10):
        x = G1_X + 8 * kk
        A(f"""buffer_load_dwordx4 v[{x}:{x+3}], v2, s[{WS}:{WS+3}], s88 offen sc1
        buffer_load_dwordx4 v[{x+4}:{x+7}], v2, s[{WS}:{WS+3}], s88 offen offset:1024 sc1
        s_add_u32 s88, s88, 2048""")

def g1_stats_publish(A):
    A("s_waitcnt vmcnt(20)\ns_mov_b32 s62, 0x3f803f80")
    def stat(base, o):
        A(f"v_mov_b32 v{o}, 0\nv_mov_b32 v{o+1}, 0\nv_mov_b32 v{o+2}, 0\nv_mov_b32 v{o+3}, 0")
        for blk in range(2):
            r = base + 4 * blk
            A(f"""v_dot2_f32_bf16 v{o}, v{r}, s62, v{o}
            v_dot2_f32_bf16 v{o+1}, v{r}, v{r}, v{o+1}
            v_dot2_f32_bf16 v{o+2}, v{r+2}, s62, v{o+2}
            v_dot2_f32_bf16 v{o+3}, v{r+2}, v{r+2}, v{o+3}
            v_dot2_f32_bf16 v{o}, v{r+1}, s62, v{o}
            v_dot2_f32_bf16 v{o+1}, v{r+1}, v{r+1}, v{o+1}
            v_dot2_f32_bf16 v{o+2}, v{r+3}, s62, v{o+2}
            v_dot2_f32_bf16 v{o+3}, v{r+3}, v{r+3}, v{o+3}""")
    stat(208, 224)
    stat(216, 228)
    red_g(A, [224, 225, 226, 227, 228, 229, 230, 231], 10)
    lab = A.newlabel("st2")
    A(f"""s_mul_i32 s62, s{S_LAYER}, {64*20*256}
    s_mul_i32 s63, s{S_RB}, {20*256}
    s_add_u32 s62, s62, s63
    s_add_u32 s89, s62, {PST1}
    s_lshl_b32 s63, s{S_CT}, 8
    s_add_u32 s62, s89, s63
    s_mov_b64 s[98:99], exec
    s_mov_b64 exec, 0xffff
    buffer_store_dwordx4 v[224:227], v2, s[{WS}:{WS+3}], s62 offen sc1
    s_add_u32 s62, s62, {16*256}
    s_cmp_ge_u32 s{S_CT}, 4
    s_cbranch_scc1 {lab}
    buffer_store_dwordx4 v[228:231], v2, s[{WS}:{WS+3}], s62 offen sc1""")
    A.label(lab)
    A("s_mov_b64 exec, s[98:99]")

SIGK = 14
def interleave(A, mfmas, fillers):
    for k, m in enumerate(mfmas):
        A(m)
        for f in fillers.get(k, []):
            A(f)

def g1_main(A, signal_stats=True, w2_loads=0):
    A(f"""v_mov_b32 v3, v2
    v_add_u32 v4, {9*7168}, v2
    v_add_u32 v5, {18*7168}, v2""")
    def wreads(kk):
        out = []
        base, o = (3, kk) if kk < 9 else ((4, kk - 9) if kk < 18 else (5, kk - 18))
        for n in range(7):
            r = G1_W[kk & 1] + 4 * n
            out.append(f"ds_read_b128 v[{r}:{r+3}], v{base} offset:{o*7168 + 1024*n}")
        return out
    def xloads(kk):
        x = G1_X + 8 * (kk % 10)
        return [f"buffer_load_dwordx4 v[{x}:{x+3}], v2, s[{WS}:{WS+3}], s88 offen sc1",
                f"buffer_load_dwordx4 v[{x+4}:{x+7}], v2, s[{WS}:{WS+3}], s88 offen offset:1024 sc1\ns_add_u32 s88, s88, 2048"]
    def swaps(kk):
        x = G1_X + 8 * (kk % 10)
        return [f"v_swap_b32 v{x+2}, v{x+4}", f"v_swap_b32 v{x+3}, v{x+5}"]
    issued = [("x", k) for k in range(10) for _ in range(2)]
    def wait_for(kk):
        last = max(i for i, t in enumerate(issued) if t == ("x", kk))
        return len(issued) - 1 - last
    w2f = 0
    for ln in wreads(0): A(ln)
    A(f"s_waitcnt vmcnt({wait_for(0)})")
    for ln in swaps(0): A(ln)
    A("s_nop 0")
    for kk in range(20):
        x = G1_X + 8 * (kk % 10)
        mf = []
        for n in range(7):
            for p in range(2):
                w = G1_W[kk & 1] + 4 * n
                c = g1_acc(p, n)
                cin = "0" if kk == 0 else f"v[{c}:{c+3}]"
                mf.append(f"v_mfma_f32_16x16x32_bf16 v[{c}:{c+3}], v[{w}:{w+3}], v[{x+4*p}:{x+4*p+3}], {cin}")
        F = {}
        if kk < 19:
            for i, ln in enumerate(wreads(kk + 1)): F.setdefault(i, []).append(ln)
        if 1 <= kk <= 10:
            xl = xloads(kk + 9)
            F.setdefault(7, []).append(xl[0]); F.setdefault(8, []).append(xl[1])
            issued += [("x", kk + 9)] * 2
        if w2_loads:
            for j in range(w2_loads):
                n = w2f % 5; i_ = w2f // 5
                sb, off = (86, 1024 * n) if n < 2 else (87, 1024 * (n - 2))
                ln = f"buffer_load_dwordx4 {w2reg(w2f)}, v2, s[{WS}:{WS+3}], s{sb} offen offset:{off} sc1"
                if n == 4: ln += "\ns_add_u32 s86, s86, 5120\ns_add_u32 s87, s87, 5120"
                F.setdefault(9 + 4 * j, []).append(ln)
                if 9 + 4 * j < 10: issued.append(("w", w2f))
                w2f += 1
        if kk < 19:
            if signal_stats and kk + 1 == SIGK:
                F.setdefault(10, []).append("s_waitcnt vmcnt(0)")
                F[10].append(f"""s_lshl_b32 s62, s{S_RB}, 7
                s_add_u32 s62, s62, {CTRL + C_ST1*128}
                s_mov_b64 s[98:99], exec
                s_mov_b64 exec, 1
                v_mov_b32 v6, s62
                v_mov_b32 v7, 1
                buffer_atomic_add v7, v6, s[{WS}:{WS+3}], 0 offen
                s_mov_b64 exec, s[98:99]""")
            elif not (signal_stats and kk + 1 > SIGK):
                F.setdefault(10, []).append(f"s_waitcnt vmcnt({wait_for(kk + 1)})")
            sw = swaps(kk + 1)
            F.setdefault(11, []).append(sw[0]); F.setdefault(12, []).append(sw[1])
        if w2_loads > 1:
            issued.append(("w", w2f - 1))
        A("s_waitcnt lgkmcnt(0)")
        interleave(A, mf, F)
    return w2f

def gather_stats(A, base_sreg, nm, out, n_elems):
    A(f"""v_and_b32 v6, 15, v1
    v_lshrrev_b32 v7, 4, v1
    v_lshlrev_b32 v7, 8, v7
    v_lshl_add_u32 v6, v6, 4, v7
    s_add_u32 s63, s{base_sreg}, 4096""")
    T = 100
    for m in range(nm):
        if m < 4: A(f"buffer_load_dwordx4 v[{T+4*m}:{T+4*m+3}], v6, s[{WS}:{WS+3}], s{base_sreg} offen offset:{1024*m} sc1")
        else: A(f"buffer_load_dwordx4 v[{T+4*m}:{T+4*m+3}], v6, s[{WS}:{WS+3}], s63 offen sc1")
    A("s_waitcnt vmcnt(0)")
    for m in range(1, nm):
        for c in range(4):
            A(f"v_add_f32 v{T+c}, v{T+c}, v{T+4*m+c}")
    red_g(A, [T, T + 1, T + 2, T + 3], 10)
    inv = hex(f2u(1.0 / n_elems)); eps = hex(f2u(1e-5))
    for h in range(2):
        sm, sq = T + 2 * h, T + 2 * h + 1
        A(f"""v_mul_f32 v{out+2*h}, {inv}, v{sm}
        v_mul_f32 v{sq}, {inv}, v{sq}
        v_fma_f32 v{sq}, -v{out+2*h}, v{out+2*h}, v{sq}
        v_max_f32 v{sq}, 0, v{sq}
        v_add_f32 v{sq}, {eps}, v{sq}
        v_rsq_f32 v{out+2*h+1}, v{sq}""")

def g1_epilogue(A, wait_stats=True):
    A(f"""v_lshrrev_b32 v8, 4, v1
    v_lshlrev_b32 v8, 4, v8
    s_mul_i32 s62, s{S_CT}, 448
    s_add_u32 s62, s62, {CS}""")
    for n in range(7):
        A(f"buffer_load_dwordx4 v[{72+4*n}:{75+4*n}], v8, s[{WS}:{WS+3}], s62 offen offset:{64*n} sc1")
    if wait_stats:
        A(f"""s_lshl_b32 s64, s{S_RB}, 7
        s_add_u32 s64, s64, {CTRL + C_ST1*128}
        s_add_u32 s65, s{S_LAYER}, 1
        s_lshl_b32 s65, s65, 4""")
        wait_counters(A, "s64", 1, "s65", vt=6, only_wave0=False, barrier=False)
    gather_stats(A, 89, 5, 124, 640)
    A(f"""s_mul_i32 s62, s{S_RB}, {108*1024}
    s_mul_i32 s63, s{S_CT}, {7*1024}
    s_add_u32 s62, s62, s63
    s_add_u32 s62, s62, s{S_H}""")
    lab = A.newlabel("g1skip")
    for n in range(7):
        if n == 3:
            A(f"s_cmp_eq_u32 s{S_CT}, 15\ns_cbranch_scc1 {lab}")
        o = 128 + 4 * n
        for p in range(2):
            c = g1_acc(p, n); mu, r = 124 + 2 * p, 125 + 2 * p
            for d in range(2):
                A(f"""v_pk_fma_f32 v[{c+2*d}:{c+2*d+1}], v[{72+4*n+2*d}:{72+4*n+2*d+1}], v[{mu}:{mu+1}], v[{c+2*d}:{c+2*d+1}] op_sel_hi:[1,0,1] neg_lo:[0,1,0] neg_hi:[0,1,0]
                v_pk_mul_f32 v[{c+2*d}:{c+2*d+1}], v[{c+2*d}:{c+2*d+1}], v[{mu}:{mu+1}] op_sel:[0,1] op_sel_hi:[1,1]
                v_cvt_pk_bf16_f32 v{o+2*p+d}, v{c+2*d}, v{c+2*d+1}
                v_pk_max_i16 v{o+2*p+d}, v{o+2*p+d}, 0""")
        A(f"buffer_store_dwordx4 v[{o}:{o+3}], v2, s[{WS}:{WS+3}], s62 offen offset:{1024*(n%4)} sc1")
        if n == 3: A("s_add_u32 s62, s62, 4096")
    A.label(lab)

G2_ACC, G2_H = 16, 96
def g2_acc(rb, p, n): return G2_ACC + 4 * (10 * rb + 2 * n + p)

def g2_issue(A):
    A(f"""s_mul_i32 s62, s{S_WAVE}, 14
    s_cmp_ge_u32 s{S_WAVE}, 3
    s_cselect_b32 s63, 1, 0
    s_sub_u32 s62, s62, s63                  ; kb0
    s_lshl_b32 s62, s62, 11
    s_add_u32 s62, s62, s{S_H}
    s_mul_i32 s63, s{S_RBO}, {108*1024}
    s_add_u32 s90, s62, s63
    s_xor_b32 s63, s{S_RBO}, 1
    s_mul_i32 s63, s63, {108*1024}
    s_add_u32 s91, s62, s63""")
    for i in range(6):
        g2_loads(A, i)

def g2_loads(A, i):
    h = G2_H + 16 * (i % 6)
    A(f"""buffer_load_dwordx4 v[{h}:{h+3}], v2, s[{WS}:{WS+3}], s90 offen sc1
    buffer_load_dwordx4 v[{h+4}:{h+7}], v2, s[{WS}:{WS+3}], s90 offen offset:1024 sc1
    buffer_load_dwordx4 v[{h+8}:{h+11}], v2, s[{WS}:{WS+3}], s91 offen sc1
    buffer_load_dwordx4 v[{h+12}:{h+15}], v2, s[{WS}:{WS+3}], s91 offen offset:1024 sc1
    s_add_u32 s90, s90, 2048
    s_add_u32 s91, s91, 2048""")

def g2_main(A, extra_young=0, w2_from=None):
    lab = A.newlabel("g2end")
    issued = [("h", k) for k in range(6) for _ in range(4)] + [("e", 0)] * extra_young
    def wait_for(tag):
        last = max(i for i, t in enumerate(issued) if t == tag)
        return len(issued) - 1 - last
    def swaps(i):
        h = G2_H + 16 * (i % 6)
        return [f"v_swap_b32 v{h+2}, v{h+4}", f"v_swap_b32 v{h+3}, v{h+5}", f"v_swap_b32 v{h+10}, v{h+12}", f"v_swap_b32 v{h+11}, v{h+13}"]
    def hloads(i):
        h = G2_H + 16 * (i % 6)
        return [f"buffer_load_dwordx4 v[{h}:{h+3}], v2, s[{WS}:{WS+3}], s90 offen sc1",
                f"buffer_load_dwordx4 v[{h+4}:{h+7}], v2, s[{WS}:{WS+3}], s90 offen offset:1024 sc1\ns_add_u32 s90, s90, 2048",
                f"buffer_load_dwordx4 v[{h+8}:{h+11}], v2, s[{WS}:{WS+3}], s91 offen sc1",
                f"buffer_load_dwordx4 v[{h+12}:{h+15}], v2, s[{WS}:{WS+3}], s91 offen offset:1024 sc1\ns_add_u32 s91, s91, 2048"]
    wf = w2_from
    A(f"s_waitcnt vmcnt({wait_for(('h', 0))})")
    for ln in swaps(0): A(ln)
    A("s_nop 0")
    for i in range(14):
        h = G2_H + 16 * (i % 6)
        if i == 13:
            A(f"s_cmp_ge_u32 s{S_WAVE}, 2\ns_cbranch_scc1 {lab}")
        mf = []
        for n in range(5):
            for rb in range(2):
                for p in range(2):
                    c = g2_acc(rb, p, n)
                    cin = "0" if i == 0 else f"v[{c}:{c+3}]"
                    mf.append(f"v_mfma_f32_16x16x32_bf16 v[{c}:{c+3}], {w2reg(5*i+n)}, v[{h+8*rb+4*p}:{h+8*rb+4*p+3}], {cin}")
        F = {}
        if 1 <= i <= 8:
            for j, ln in enumerate(hloads(i + 5)): F.setdefault(j, []).append(ln)
            issued += [("h", i + 5)] * 4
        if wf is not None and wf < 70:
            for j in range(5):
                n = wf % 5
                sb, off = (86, 1024 * n) if n < 2 else (87, 1024 * (n - 2))
                ln = f"buffer_load_dwordx4 {w2reg(wf)}, v2, s[{WS}:{WS+3}], s{sb} offen offset:{off} sc1"
                if n == 4: ln += "\ns_add_u32 s86, s86, 5120\ns_add_u32 s87, s87, 5120"
                F.setdefault(5 + j, []).append(ln)
                issued.append(("w", wf // 5))
                wf += 1
        if i < 13:
            need = [wait_for(("h", i + 1))]
            if any(t == ("w", i + 1) for t in issued): need.append(wait_for(("w", i + 1)))
            F.setdefault(12, []).append(f"s_waitcnt vmcnt({min(need)})")
            for j, ln in enumerate(swaps(i + 1)): F.setdefault(13 + j, []).append(ln)
        interleave(A, mf, F)
    A.label(lab)
    A("s_waitcnt vmcnt(0)")

def g2_reduce(A):
    A(f"""s_lshr_b32 s62, s{S_WAVE}, 1
    s_mul_i32 s63, s62, {5*2048}
    s_xor_b32 s62, s62, 1
    s_mul_i32 s64, s62, {5*2048}
    s_mul_i32 s65, s{S_ODD}, {3*2048}
    s_sub_u32 s66, 1, s{S_ODD}
    s_lshl_b32 s66, s66, 12                  ; even: 2*2048
    s_add_u32 s62, s63, s65
    s_add_u32 s62, s62, {RED}
    v_add_u32 v3, s62, v2
    s_add_u32 s62, s63, s66
    s_add_u32 s62, s62, {RED}
    v_add_u32 v4, s62, v2
    s_add_u32 s62, s64, s65
    s_add_u32 s62, s62, {RED}
    v_add_u32 v5, s62, v2
    s_add_u32 s62, s64, s66
    s_add_u32 s62, s62, {RED}
    v_add_u32 v6, s62, v2
    s_nop 3""")
    def wr(rb, n):
        base = (3 if rb == 0 else 5) + (0 if n < 2 else 1)
        off = 2048 * (n if n < 2 else n - 2)
        c = g2_acc(rb, 0, n)
        A(f"ds_write_b128 v{base}, v[{c}:{c+3}] offset:{off}\nds_write_b128 v{base}, v[{c+4}:{c+7}] offset:{off+1024}")
    T = 96
    for t in (1, 2, 3):
        rb = 0 if t == 1 else 1
        l1 = A.newlabel("rw")
        if t == 2:
            wr(rb, 0); wr(rb, 1)
            A(f"s_cmp_eq_u32 s{S_ODD}, 1\ns_cbranch_scc1 {l1}")
            wr(rb, 2)
        else:
            wr(rb, 3); wr(rb, 4)
            A(f"s_cmp_eq_u32 s{S_ODD}, 0\ns_cbranch_scc1 {l1}")
            wr(rb, 2)
        A.label(l1)
        A("s_waitcnt lgkmcnt(0)\ns_barrier")
        l2 = A.newlabel("rr")
        for n in range(3):
            if n == 2:
                A(f"s_cmp_eq_u32 s{S_ODD}, 1\ns_cbranch_scc1 {l2}")
            base = 3 if n < 2 else 4
            off = 2048 * (n if n < 2 else 0)
            A(f"ds_read_b128 v[{T+8*n}:{T+8*n+3}], v{base} offset:{off}\nds_read_b128 v[{T+8*n+4}:{T+8*n+7}], v{base} offset:{off+1024}")
            A("s_waitcnt lgkmcnt(0)")
            c = g2_acc(0, 0, n)
            for x in range(0, 8, 2):
                A(f"v_pk_add_f32 v[{c+x}:{c+x+1}], v[{c+x}:{c+x+1}], v[{T+8*n+x}:{T+8*n+x+1}]")
        A.label(l2)
        if t < 3:
            A("s_barrier")

def g2_res_issue(A, with_y):
    A(f"""s_mul_i32 s62, s{S_RBO}, 40
    s_mul_i32 s63, s{S_CT2}, 5
    s_add_u32 s62, s62, s63
    s_mul_i32 s63, s{S_ODD}, 3
    s_add_u32 s62, s62, s63
    s_lshl_b32 s92, s62, 10
    s_add_u32 s62, s92, s{S_X}""")
    for n in range(3):
        A(f"buffer_load_dwordx4 v[{192+4*n}:{195+4*n}], v2, s[{WS}:{WS+3}], s62 offen offset:{1024*n} sc1")
    if with_y:
        A(f"s_add_u32 s62, s92, {YQ}")
        for n in range(3):
            A(f"buffer_load_dwordx4 v[{204+4*n}:{207+4*n}], v2, s[{WS}:{WS+3}], s62 offen offset:{1024*n} sc1")
    return 6 if with_y else 3

def g2_add_residual(A):
    for n in range(3):
        c = g2_acc(0, 0, n); x = 192 + 4 * n
        for h in range(2):
            for d in range(2):
                A(f"""v_lshlrev_b32 v8, 16, v{x+2*h+d}
                v_and_b32 v9, 0xffff0000, v{x+2*h+d}
                v_pk_add_f32 v[{c+4*h+2*d}:{c+4*h+2*d+1}], v[{c+4*h+2*d}:{c+4*h+2*d+1}], v[8:9]""")

def g2_epilogue_mid(A, sync_stats=True):
    g2_add_residual(A)
    A("v_mov_b32 v100, 0\nv_mov_b32 v101, 0\nv_mov_b32 v102, 0\nv_mov_b32 v103, 0")
    lab = A.newlabel("ps")
    for n in range(3):
        if n == 2: A(f"s_cmp_eq_u32 s{S_ODD}, 1\ns_cbranch_scc1 {lab}")
        c = g2_acc(0, 0, n)
        for h in range(2):
            for x in range(4):
                A(f"v_add_f32 v{100+2*h}, v{100+2*h}, v{c+4*h+x}\nv_fmac_f32 v{101+2*h}, v{c+4*h+x}, v{c+4*h+x}")
    A.label(lab)
    red_g(A, [100, 101, 102, 103], 10)
    A(f"""s_lshl_b32 s62, s{S_RBO}, 12
    s_add_u32 s93, s62, {PST2}
    s_lshl_b32 s62, s{S_CT2}, 1
    s_add_u32 s62, s62, s{S_ODD}
    s_lshl_b32 s62, s62, 8
    s_add_u32 s62, s62, s93
    s_mov_b64 s[98:99], exec
    s_mov_b64 exec, 0xffff
    buffer_store_dwordx4 v[100:103], v2, s[{WS}:{WS+3}], s62 offen sc1
    s_mov_b64 exec, s[98:99]""")
    if sync_stats:
        A(f"""s_lshl_b32 s64, s{S_RBO}, 7
        s_add_u32 s64, s64, {CTRL + C_ST2*128}""")
        signal(A, "s64", per_wave=True)
        wait_counters(A, "s64", 1, 16, vt=6, only_wave0=False, barrier=False)
    gather_stats(A, 93, 4, 124, 640)
    A(f"""v_mul_f32 v122, v124, v125
    v_mul_f32 v123, v126, v127
    s_add_u32 s62, s92, {X3Q}""")
    lab = A.newlabel("x3")
    for n in range(3):
        if n == 2: A(f"s_cmp_eq_u32 s{S_ODD}, 1\ns_cbranch_scc1 {lab}")
        c = g2_acc(0, 0, n); y = 204 + 4 * n; o = 128 + 4 * n
        for h in range(2):
            r_, mr = 125 + 2 * h, 122 + h
            for d in range(2):
                e = c + 4 * h + 2 * d
                A(f"""v_lshlrev_b32 v8, 16, v{y+2*h+d}
                v_and_b32 v9, 0xffff0000, v{y+2*h+d}
                v_fma_f32 v10, v{e}, v{r_}, -v{mr}
                v_fma_f32 v11, v{e+1}, v{r_}, -v{mr}
                v_fmac_f32 v{e}, v10, v8
                v_fmac_f32 v{e+1}, v11, v9
                v_cvt_pk_bf16_f32 v{o+2*h+d}, v{e}, v{e+1}""")
        A(f"buffer_store_dwordx4 v[{o}:{o+3}], v2, s[{WS}:{WS+3}], s62 offen offset:{1024*n} sc1")
    A.label(lab)

def g2_epilogue_out(A):
    g2_add_residual(A)
    srd(A, SA, P_OUT, S_ * D_ * 2)
    A(f"""v_and_b32 v6, 15, v1
    v_mul_u32_u24 v6, 2560, v6
    v_lshrrev_b32 v7, 4, v1
    v_lshl_add_u32 v6, v7, 3, v6
    s_mul_i32 s62, s{S_RBO}, {32*1280}
    s_mul_i32 s63, s{S_CT2}, 160
    s_add_u32 s62, s62, s63
    s_mul_i32 s63, s{S_ODD}, 96
    s_add_u32 s62, s62, s63""")
    lab = A.newlabel("out")
    for n in range(3):
        if n == 2: A(f"s_cmp_eq_u32 s{S_ODD}, 1\ns_cbranch_scc1 {lab}")
        c = g2_acc(0, 0, n); o = 128 + 4 * n
        for h in range(2):
            for d in range(2):
                A(f"v_cvt_pk_bf16_f32 v{o+2*h+d}, v{c+4*h+2*d}, v{c+4*h+2*d+1}")
        A(f"""buffer_store_dwordx2 v[{o}:{o+1}], v6, s[{SA}:{SA+3}], s62 offen offset:{32*n}
        buffer_store_dwordx2 v[{o+2}:{o+3}], v6, s[{SA}:{SA+3}], s62 offen offset:{32*n + 1280}""")
    A.label(lab)
```

```python
import sys
from common import *
import p0, conv, gemm
from gemm import S_CL, S_CT, S_LAYER, S_X, S_H, S_RB, S_RBO

TARGET = '.amdgcn_target "amdgcn-amd-amdhsa--gfx950"\n'
DBG = 28

def zero_ctrl(A):
    A("""v_mov_b32 v8, 0
    v_mov_b32 v9, 0
    v_mov_b32 v10, 0
    v_mov_b32 v11, 0
    v_lshlrev_b32 v6, 4, v0""")
    n = (N_CNT * 128 + 4095) // 4096
    for i in range(n):
        A(f"s_mov_b32 s62, {CTRL + 4096*i}\nbuffer_store_dwordx4 v[8:11], v6, s[{WS}:{WS+3}], s62 offen sc1")
    lab = A.newlabel("zc")
    A(f"""s_waitcnt vmcnt(0)
    s_barrier
    s_cmp_lg_u32 s{S_WAVE}, 0
    s_cbranch_scc1 {lab}
    s_mov_b64 s[98:99], exec
    s_mov_b64 exec, 1
    v_mov_b32 v6, 0
    v_mov_b32 v7, 1
    buffer_store_dword v7, v6, s[{DBG}:{DBG+3}], 0 offen sc1
    s_mov_b64 exec, s[98:99]""")
    A.label(lab)

def wait_init(A):
    lab = A.newlabel("wi"); done = A.newlabel("wid"); skip = A.newlabel("wis")
    A(f"""s_cmp_lg_u32 s{S_WAVE}, 0
    s_cbranch_scc1 {skip}
    s_mov_b64 s[98:99], exec
    s_mov_b64 exec, 1
    v_mov_b32 v4, 0
    s_mov_b32 s97, {SPIN_MAX}""")
    A.label(lab)
    A(f"""buffer_load_dword v5, v4, s[{DBG}:{DBG+3}], 0 offen sc1
    s_waitcnt vmcnt(0)
    v_cmp_eq_u32 vcc, 0, v5
    s_nop 1
    s_cbranch_vccz {done}
    s_sub_u32 s97, s97, 1
    s_cmp_eq_u32 s97, 0
    s_cbranch_scc1 {done}
    s_sleep 1
    s_branch {lab}""")
    A.label(done)
    A("s_mov_b64 exec, s[98:99]")
    A.label(skip)

def code_prefetch(A, end_label):
    l0 = A.newlabel("pc")
    A(f"s_getpc_b64 s[62:63]")
    A.label(l0)
    A(f"""s_sub_u32 s62, s62, {l0}-{KN}
    s_subb_u32 s63, s63, 0
    s_mov_b32 s{SA}, s62
    s_mov_b32 s{SA+1}, s63
    s_mov_b32 s{SA+2}, {end_label}-{KN}
    s_mov_b32 s{SA+3}, 0x20000
    v_lshlrev_b32 v6, 7, v0
    buffer_load_dword v254, v6, s[{SA}:{SA+3}], 0 offen
    s_mov_b32 s62, 32768
    buffer_load_dword v255, v6, s[{SA}:{SA+3}], s62 offen""")

def build(prefetch=True):
    A = Asm()
    A.L.append(head(KN))
    prologue(A, 256, "L_exit")
    srd(A, DBG, P_DBG, 256)
    stamp(A, 0)
    A(f"""s_cmp_ge_u32 s{S_WG}, 160
    s_cbranch_scc1 L_roleB""")
    p0.p0_kv_issue(A)
    conv.conv_issue_ssm(A)
    p0.p0_kv_compute(A, 12)
    stamp(A, 1)
    wait_init(A)
    A(f"s_lshr_b32 s64, s{S_WG}, 4\ns_lshl_b32 s64, s64, 7\ns_add_u32 s64, s64, {CTRL + C_KV*128}")
    signal(A, "s64")
    stamp(A, 2)
    conv.conv_build(A, None)
    A(f"s_lshr_b32 s64, s{S_WG}, 4\ns_lshl_b32 s64, s64, 7\ns_add_u32 s64, s64, {CTRL + C_KV*128}")
    wait_counters(A, "s64", 1, 16)
    stamp(A, 3)
    conv.conv_load_u(A)
    wait_counters(A, C_Q, 4, 16)
    conv.conv_epilogue_loads(A)
    stamp(A, 4)
    conv.conv_main(A)
    stamp(A, 5)
    conv.conv_epilogue(A)
    A(f"s_and_b32 s64, s{S_WG}, 15\ns_lshl_b32 s64, s64, 7\ns_add_u32 s64, s64, {CTRL + C_CONV*128}")
    signal(A, "s64")
    stamp(A, 6)
    A("s_branch L_ffn")
    A.label("L_roleB")
    if prefetch:
        code_prefetch(A, "L_code_end")
    A(f"""s_cmp_ge_u32 s{S_WG}, 224
    s_cbranch_scc1 L_w1task""")
    p0.task_q(A)
    wait_init(A)
    A(f"s_sub_u32 s64, s{S_WG}, 160\ns_lshr_b32 s64, s64, 4\ns_lshl_b32 s64, s64, 7\ns_add_u32 s64, s64, {CTRL + C_Q*128}")
    signal(A, "s64")
    stamp(A, 1)
    A(f"""s_sub_u32 s67, s{S_WG}, 160
    s_cmp_ge_u32 s67, 54
    s_cbranch_scc1 L_ffn""")
    p0.task_w2(A, 67)
    A(f"s_and_b32 s64, s67, 1\ns_lshl_b32 s64, s64, 7\ns_add_u32 s64, s64, {CTRL + C_W2*128}")
    signal(A, "s64")
    stamp(A, 2)
    A("s_branch L_ffn")
    A.label("L_w1task")
    A(f"""s_sub_u32 s67, s{S_WG}, 224
    s_cmp_lt_u32 s67, 27
    s_cbranch_scc1 L_w1go
    s_cmp_lg_u32 s{S_WG}, 255
    s_cbranch_scc1 L_ffn""")
    zero_ctrl(A)
    A("s_branch L_ffn")
    A.label("L_w1go")
    p0.task_w1(A, 67)
    wait_init(A)
    signal(A, C_W1)
    stamp(A, 2)
    A.label("L_ffn")
    gemm.ffn_ids(A)
    wait_init(A)
    wait_counters(A, C_W1, 1, 27)
    gemm.load_w1_lds(A)
    wait_counters(A, C_W2, 2, 27, barrier=False)
    A("s_barrier")
    gemm.w2_bases(A)
    stamp(A, 7)
    for layer in range(2):
        b = 8 + 10 * layer
        A(f"""s_mov_b32 s{S_LAYER}, {layer}
        s_mov_b32 s{S_X}, {X1Q if layer == 0 else X3Q}
        s_mov_b32 s{S_H}, {H1Q if layer == 0 else H2Q}""")
        if layer == 0:
            wait_counters(A, C_CONV, 16, 10)
        else:
            A(f"s_lshl_b32 s64, s{S_CL}, 7\ns_add_u32 s64, s64, {CTRL + C_X3*128}")
            wait_counters(A, "s64", 1, 16)
        stamp(A, b)
        if layer == 0:
            A("s_waitcnt vmcnt(0)")
        gemm.g1_issue(A)
        gemm.g1_stats_publish(A)
        A("s_barrier")
        stamp(A, b + 1)
        nw2 = gemm.g1_main(A, w2_loads=2 if layer == 0 else 0)
        stamp(A, b + 2)
        gemm.g1_epilogue(A)
        A(f"s_lshl_b32 s64, s{S_CL}, 7\ns_add_u32 s64, s64, {CTRL + C_H*128}")
        signal(A, "s64")
        stamp(A, b + 3)
        wait_counters(A, "s64", 1, 16 * (layer + 1))
        stamp(A, b + 4)
        gemm.g2_issue(A)
        n = gemm.g2_res_issue(A, layer == 0)
        gemm.g2_main(A, n, w2_from=nw2 if layer == 0 else None)
        stamp(A, b + 5)
        gemm.g2_reduce(A)
        stamp(A, b + 6)
        if layer == 0:
            gemm.g2_epilogue_mid(A)
            A(f"s_lshl_b32 s64, s{S_CL}, 7\ns_add_u32 s64, s64, {CTRL + C_X3*128}")
            signal(A, "s64")
        else:
            gemm.g2_epilogue_out(A)
        stamp(A, b + 7)
    A.label("L_exit")
    A("s_endpgm")
    A.label("L_code_end")
    A.L.append(desc(KN))
    txt = "; @launch grid=(256,1,1) block=(256,1,1) lds=163840\n" + TARGET + A.text()
    for p in lint(txt): print("LINT:", p)
    return txt

if __name__ == "__main__":
    out = sys.argv[1]
    if "stamp" in sys.argv[2:]: STAMP_ON[0] = True
    open(out, "w").write(build(prefetch="nopf" not in sys.argv[2:]))
```

```python
from emit import *

S_, D_, F_ = 2048, 640, 1728
KN = "interleave_layers__ssm_conv_h3__dense_activation_relu__prompt_kernel"

CTRL = 0x0000000
KVT  = 0x0010000
QQ   = KVT + 0x280000
YQ   = QQ + 0x280000
X1Q  = YQ + 0x280000
X3Q  = X1Q + 0x280000
ST0  = X3Q + 0x280000
CS   = ST0 + 0x4000
PST1 = CS + 0x2000
PST2 = PST1 + 2 * 64 * 20 * 256
W1P  = PST2 + 64 * 16 * 256
W2P  = W1P + 16 * 140 * 1024
H1Q  = W2P + 8 * 270 * 1024
H2Q  = H1Q + 64 * 108 * 1024
WS_END = H2Q + 64 * 108 * 1024
assert all(x % 128 == 0 for x in (KVT, QQ, YQ, X1Q, X3Q, ST0, CS, PST1, PST2, W1P, W2P, H1Q, H2Q))

C_KV   = 0
C_Q    = 10
C_W1   = 14
C_W2   = 15
C_CONV = 17
C_ST1  = 33
C_H    = 97
C_ST2  = 113
C_X3   = 177
N_CNT  = 193

P_Q, P_K, P_V, P_SK, P_SSM, P_D, P_X, P_W1, P_W2, P_OUT, P_DBG, P_WS = [36 + 2 * i for i in range(12)]
WS = 8
SA, SB, SC, SD = 12, 16, 20, 24
S_WAVE = 60
S_WG = 61

def srd(A, dst, ptr, nbytes):
    A(f"""s_mov_b32 s{dst}, s{ptr}
    s_mov_b32 s{dst+1}, s{ptr+1}
    s_mov_b32 s{dst+2}, {nbytes}
    s_mov_b32 s{dst+3}, 0x20000""")

def prologue(A, nwg=256, exit_label="L_exit"):
    A(f"""s_cmp_ge_u32 s2, {nwg}
    s_cbranch_scc1 {exit_label}
    s_load_dwordx16 s[36:51], s[0:1], 0
    s_load_dwordx8 s[52:59], s[0:1], 64
    v_lshrrev_b32 v3, 6, v0
    v_and_b32 v1, 63, v0
    v_readfirstlane_b32 s{S_WAVE}, v3
    v_lshlrev_b32 v2, 4, v1
    s_mov_b32 s{S_WG}, s2
    s_waitcnt lgkmcnt(0)""")
    srd(A, WS, P_WS, 0x10000000)

def head(label):
    return f""".text
.globl {label}
.p2align 8
.type {label},@function
{label}:
"""

def desc(label, vgpr=512, accum=256, sgpr=102):
    return f"""
.section .rodata,"a"
.p2align 6
.amdhsa_kernel {label}
  .amdhsa_next_free_vgpr {vgpr}
  .amdhsa_next_free_sgpr {sgpr}
  .amdhsa_accum_offset {accum}
  .amdhsa_group_segment_fixed_size 0
  .amdhsa_kernarg_size 96
  .amdhsa_user_sgpr_count 2
  .amdhsa_user_sgpr_kernarg_segment_ptr 1
  .amdhsa_system_sgpr_workgroup_id_x 1
  .amdhsa_float_denorm_mode_32 3
.end_amdhsa_kernel
.text
"""

def signal(A, cnt_sreg_or_idx, per_wave=False):
    A("s_waitcnt vmcnt(0)")
    if not per_wave:
        A("s_barrier")
    lab = A.newlabel("sig")
    if not per_wave:
        A(f"s_cmp_lg_u32 s{S_WAVE}, 0\ns_cbranch_scc1 {lab}")
    A("s_mov_b64 s[98:99], exec\ns_mov_b64 exec, 1")
    if isinstance(cnt_sreg_or_idx, int):
        A(f"v_mov_b32 v4, {CTRL + cnt_sreg_or_idx * 128}")
    else:
        A(f"v_mov_b32 v4, {cnt_sreg_or_idx}")
    A(f"""v_mov_b32 v5, 1
    buffer_atomic_add v5, v4, s[{WS}:{WS+3}], 0 offen
    s_mov_b64 exec, s[98:99]""")
    if not per_wave:
        A.label(lab)

SPIN_MAX = 1 << 22

def wait_counters(A, first, n, target, vt=4, only_wave0=True, barrier=True):
    lab = A.newlabel("w"); done = A.newlabel("wd"); skip = A.newlabel("ws")
    if only_wave0:
        A(f"s_cmp_lg_u32 s{S_WAVE}, 0\ns_cbranch_scc1 {skip}")
    A(f"s_mov_b64 s[98:99], exec\ns_mov_b64 exec, {(1 << n) - 1 if n <= 32 else -1}" if n <= 6 else
      f"s_mov_b64 s[98:99], exec\ns_mov_b32 exec_lo, {hex((1 << n) - 1)}\ns_mov_b32 exec_hi, 0")
    A(f"v_lshlrev_b32 v{vt}, 7, v1")
    if isinstance(first, int):
        A(f"v_add_u32 v{vt}, {CTRL + first * 128}, v{vt}")
    else:
        A(f"v_add_u32 v{vt}, {first}, v{vt}")
    tgt = target if isinstance(target, str) else str(target)
    A(f"s_mov_b32 s97, {SPIN_MAX}")
    A.label(lab)
    A(f"""buffer_load_dword v{vt+1}, v{vt}, s[{WS}:{WS+3}], 0 offen sc1
    s_waitcnt vmcnt(0)
    v_cmp_gt_u32 vcc, {tgt}, v{vt+1}
    s_nop 1
    s_cbranch_vccz {done}
    s_sub_u32 s97, s97, 1
    s_cmp_eq_u32 s97, 0
    s_cbranch_scc1 {done}
    s_sleep 1
    s_branch {lab}""")
    A.label(done)
    A("s_mov_b64 exec, s[98:99]")
    if only_wave0:
        A.label(skip)
    if barrier:
        A("s_barrier")

STAMPS = 0x3000000
STAMP_ON = [False]
def stamp(A, i):
    if not STAMP_ON[0]: return
    A(f"""s_memrealtime s[94:95]
    s_memtime s[100:101]
    s_waitcnt lgkmcnt(0)
    v_writelane_b32 v13, s94, {i}
    v_writelane_b32 v14, s100, {i}""")

def stamp_init(A):
    if not STAMP_ON[0]: return
    A("v_mov_b32 v13, 0\nv_mov_b32 v14, 0")

def stamp_flush(A):
    if not STAMP_ON[0]: return
    lab = A.newlabel("stf")
    A(f"""s_cmp_lg_u32 s{S_WAVE}, 0
    s_cbranch_scc1 {lab}
    s_lshl_b32 s96, s{S_WG}, 8
    s_add_u32 s96, s96, {STAMPS}
    v_lshlrev_b32 v15, 3, v1
    v_mov_b32 v16, v13
    v_mov_b32 v17, v14
    s_mov_b32 exec_hi, 0
    buffer_store_dwordx2 v[16:17], v15, s[{WS}:{WS+3}], s96 offen""")
    A.label(lab)
```

```python
from common import *

P0_RS = 144
P0_LDS = 0

def p0_kv_issue(A):
    srd(A, SA, P_K, S_ * D_ * 2)
    srd(A, SB, P_V, S_ * D_ * 2)
    srd(A, SC, P_SK, D_ * 8)
    A(f"""s_lshr_b32 s62, s{S_WG}, 4          ; cg
    s_and_b32 s63, s{S_WG}, 15             ; tb
    s_mul_i32 s64, s63, {128 * 1280}
    s_lshl_b32 s65, s62, 7
    s_add_u32 s64, s64, s65
    v_and_b32 v6, 7, v0                    ; chunk
    v_lshrrev_b32 v7, 3, v0                ; rg
    v_mul_u32_u24 v8, 5120, v7
    v_lshl_add_u32 v8, v6, 4, v8
    v_add_u32 v8, s64, v8
    v_subrev_u32 v9, 3840, v8
    v_subrev_u32 v10, 2560, v8
    v_subrev_u32 v11, 1280, v8
    s_lshl_b32 s65, s62, 9                 ; cg*512
    v_lshlrev_b32 v12, 6, v6
    v_add_u32 v12, s65, v12
    buffer_load_dwordx4 v[16:19], v9, s[{SA}:{SA+3}], 0 offen
    buffer_load_dwordx4 v[20:23], v10, s[{SA}:{SA+3}], 0 offen
    buffer_load_dwordx4 v[24:27], v11, s[{SA}:{SA+3}], 0 offen""")
    for i in range(4):
        A(f"buffer_load_dwordx4 v[{28+4*i}:{31+4*i}], v8, s[{SA}:{SA+3}], 0 offen offset:{1280*i}")
    for i in range(4):
        A(f"buffer_load_dwordx4 v[{44+4*i}:{47+4*i}], v8, s[{SB}:{SB+3}], 0 offen offset:{1280*i}")
    for i in range(4):
        A(f"buffer_load_dwordx4 v[{60+4*i}:{63+4*i}], v12, s[{SC}:{SC+3}], 0 offen offset:{16*i}")

def p0_kv_compute(A, pending_after):
    W = 80
    K = 112
    V = 168
    T = 32
    A(f"s_waitcnt vmcnt({pending_after})")
    for c in range(8):
        d0 = 60 + 2 * c; d1 = d0 + 1
        A(f"""v_lshlrev_b32 v{W+0*8+c}, 16, v{d0}
        v_and_b32 v{W+1*8+c}, 0xffff0000, v{d0}
        v_lshlrev_b32 v{W+2*8+c}, 16, v{d1}
        v_and_b32 v{W+3*8+c}, 0xffff0000, v{d1}""")
    for r in range(7):
        for d in range(4):
            A(f"""v_lshlrev_b32 v{K+8*r+2*d}, 16, v{16+4*r+d}
            v_and_b32 v{K+8*r+2*d+1}, 0xffff0000, v{16+4*r+d}""")
    for r in range(4):
        for d in range(4):
            A(f"""v_lshlrev_b32 v{V+8*r+2*d}, 16, v{44+4*r+d}
            v_and_b32 v{V+8*r+2*d+1}, 0xffff0000, v{44+4*r+d}""")
    A(f"""v_lshlrev_b32 v15, 2, v7
    v_sub_u32 v15, 127, v15
    v_mul_u32_u24 v15, {P0_RS}, v15
    v_lshl_add_u32 v15, v6, 4, v15
    v_add_u32 v15, {P0_LDS - 3 * P0_RS}, v15""")
    for i in range(4):
        for d in range(4):
            t = T + 2 * d
            A(f"v_pk_mul_f32 v[{t}:{t+1}], v[{W+2*d}:{W+2*d+1}], v[{K+8*(i+3)+2*d}:{K+8*(i+3)+2*d+1}]")
        for j in range(1, 4):
            for d in range(4):
                t = T + 2 * d
                A(f"v_pk_fma_f32 v[{t}:{t+1}], v[{W+8*j+2*d}:{W+8*j+2*d+1}], v[{K+8*(i+3-j)+2*d}:{K+8*(i+3-j)+2*d+1}], v[{t}:{t+1}]")
        for d in range(4):
            t = T + 2 * d
            A(f"v_pk_mul_f32 v[{t}:{t+1}], v[{t}:{t+1}], v[{V+8*i+2*d}:{V+8*i+2*d+1}]")
        o = 16 + 4 * i
        for d in range(4):
            t = T + 2 * d
            A(f"v_cvt_pk_bf16_f32 v{o+d}, v{t}, v{t+1}")
        A(f"ds_write_b128 v15, v[{o}:{o+3}] offset:{(3-i)*P0_RS}")
    A("s_waitcnt lgkmcnt(0)\ns_barrier")
    A(f"""v_lshrrev_b32 v6, 4, v1
    v_lshlrev_b32 v6, 5, v6
    v_and_b32 v7, 3, v1
    v_lshl_add_u32 v6, v7, 3, v6
    v_bfe_u32 v7, v1, 2, 2
    v_add_u32 v6, v6, v7
    v_mul_u32_u24 v6, {P0_RS}, v6
    s_lshl_b32 s65, s{S_WAVE}, 5
    s_add_u32 s65, s65, {P0_LDS}
    v_add_u32 v6, s65, v6""")
    for qq in range(4):
        A(f"""ds_read_b64_tr_b16 v[{16+4*qq}:{17+4*qq}], v6 offset:{8*qq}
        ds_read_b64_tr_b16 v[{18+4*qq}:{19+4*qq}], v6 offset:{8*qq + 4*P0_RS}""")
    A(f"""s_lshl_b32 s65, s62, 4
    s_lshl_b32 s66, s{S_WAVE}, 2
    s_add_u32 s65, s65, s66
    s_lshl_b32 s65, s65, 14
    s_sub_u32 s66, 15, s63
    s_lshl_b32 s66, s66, 10
    s_add_u32 s65, s65, s66
    s_add_u32 s65, s65, {KVT}""")
    for qq in range(4):
        A(f"""s_waitcnt lgkmcnt({6 - 2*qq})
        buffer_store_dwordx4 v[{16+4*qq}:{19+4*qq}], v2, s[{WS}:{WS+3}], s65 offen sc1
        s_add_u32 s65, s65, 16384""")

QT_RS = 1280 + 16
def task_q(A):
    srd(A, SA, P_Q, S_ * D_ * 2)
    A(f"""s_sub_u32 s62, s{S_WG}, 160           ; rb32
    s_mul_i32 s63, s62, {32*1280}""")
    A(f"v_lshlrev_b32 v6, 4, v0")
    for i in range(10):
        A(f"buffer_load_dwordx4 v[{16+4*i}:{19+4*i}], v6, s[{SA}:{SA+3}], s63 offen offset:0" if i == 0 else
          f"s_add_u32 s64, s63, {4096*i}\nbuffer_load_dwordx4 v[{16+4*i}:{19+4*i}], v6, s[{SA}:{SA+3}], s64 offen")
    A("s_mov_b32 s64, 0x3333334")
    for i in range(10):
        A(f"""v_add_u32 v7, {256*i}, v0
        v_mul_hi_u32 v8, v7, s64           ; row
        v_add_u32 v8, v8, v7
        v_lshlrev_b32 v{60+i}, 4, v8""")
    for i in range(10):
        A(f"s_waitcnt vmcnt({9-i})\nds_write_b128 v{60+i}, v[{16+4*i}:{19+4*i}]")
    A("s_waitcnt lgkmcnt(0)\ns_barrier")
    A(f"""v_and_b32 v6, 15, v1
    v_lshrrev_b32 v7, 4, v1
    v_mul_u32_u24 v8, {2*QT_RS}, v6
    v_lshl_add_u32 v8, v7, 3, v8
    s_mul_i32 s64, s{S_WAVE}, 320
    v_add_u32 v8, s64, v8""")
    for n in range(10):
        A(f"""ds_read_b64 v[{16+4*n}:{17+4*n}], v8 offset:{32*n}
        ds_read_b64 v[{18+4*n}:{19+4*n}], v8 offset:{32*n + QT_RS}""")
    A(f"""s_mul_i32 s64, s62, 40
    s_mul_i32 s65, s{S_WAVE}, 10
    s_add_u32 s64, s64, s65
    s_lshl_b32 s64, s64, 10
    s_add_u32 s64, s64, {QQ}""")
    A("s_waitcnt lgkmcnt(0)")
    for n in range(10):
        A(f"""buffer_store_dwordx4 v[{16+4*n}:{19+4*n}], v2, s[{WS}:{WS+3}], s64 offen sc1
        s_add_u32 s64, s64, 1024""")
    for n in range(10):
        for d in range(2):
            A(f"""v_lshlrev_b32 v{64+4*n+2*d}, 16, v{16+4*n+d}
            v_and_b32 v{65+4*n+2*d}, 0xffff0000, v{16+4*n+d}
            v_lshlrev_b32 v{104+4*n+2*d}, 16, v{18+4*n+d}
            v_and_b32 v{105+4*n+2*d}, 0xffff0000, v{18+4*n+d}""")
    def reduce_lanes_waves(e, o, ldsbase):
        for r in (e, o):
            A(f"""v_mov_b32 v10, v{r}
            s_nop 1
            v_permlane32_swap_b32 v{r}, v10
            v_add_f32 v{r}, v{r}, v10
            v_mov_b32 v10, v{r}
            s_nop 1
            v_permlane16_swap_b32 v{r}, v10
            v_add_f32 v{r}, v{r}, v10""")
        A(f"""v_and_b32 v10, 15, v1
        v_lshlrev_b32 v10, 3, v10
        s_lshl_b32 s65, s{S_WAVE}, 7
        v_add_u32 v11, s65, v10
        v_mov_b32 v158, v{e}
        v_mov_b32 v159, v{o}
        ds_write_b64 v11, v[158:159] offset:{ldsbase}
        s_waitcnt lgkmcnt(0)
        s_barrier""")
        for w in range(4):
            A(f"ds_read_b64 v[{150+2*w}:{151+2*w}], v10 offset:{ldsbase + 128*w}")
        A(f"""s_waitcnt lgkmcnt(0)
        v_add_f32 v{e}, v150, v152
        v_add_f32 v{o}, v151, v153
        v_add_f32 v{e}, v{e}, v154
        v_add_f32 v{o}, v{o}, v155
        v_add_f32 v{e}, v{e}, v156
        v_add_f32 v{o}, v{o}, v157""")
    RB = 32 * QT_RS
    A("v_mov_b32 v144, 0\nv_mov_b32 v145, 0")
    for x in range(40):
        A(f"v_add_f32 v144, v144, v{64+x}\nv_add_f32 v145, v145, v{104+x}")
    reduce_lanes_waves(144, 145, RB)
    A(f"""v_mul_f32 v144, {hex(f2u(1/640))}, v144
    v_mul_f32 v145, {hex(f2u(1/640))}, v145
    v_mov_b32 v146, 0
    v_mov_b32 v147, 0""")
    for x in range(40):
        A(f"""v_sub_f32 v10, v{64+x}, v144
        v_sub_f32 v11, v{104+x}, v145
        v_fmac_f32 v146, v10, v10
        v_fmac_f32 v147, v11, v11""")
    reduce_lanes_waves(146, 147, RB + 512)
    A(f"""v_mov_b32 v10, {hex(f2u(1e-5))}
    v_fmac_f32 v10, {hex(f2u(1/640))}, v146
    v_mov_b32 v11, {hex(f2u(1e-5))}
    v_fmac_f32 v11, {hex(f2u(1/640))}, v147
    v_rsq_f32 v10, v10
    v_rsq_f32 v11, v11
    v_mov_b32 v148, v144
    v_mov_b32 v150, v145
    v_mov_b32 v149, v10
    v_mov_b32 v151, v11""")
    lab = A.newlabel("qst")
    A(f"""s_cmp_lg_u32 s{S_WAVE}, 0
    s_cbranch_scc1 {lab}
    s_lshl_b32 s64, s62, 8
    s_add_u32 s64, s64, {ST0}
    s_mov_b64 s[98:99], exec
    s_mov_b64 exec, 0xffff
    buffer_store_dwordx4 v[148:151], v2, s[{WS}:{WS+3}], s64 offen sc1
    s_mov_b64 exec, s[98:99]""")
    A.label(lab)

import struct
def f2u(x):
    return struct.unpack("<I", struct.pack("<f", x))[0]

def task_w2(A, kb_sreg):
    srd(A, SA, P_W2, F_ * D_ * 2)
    A(f"""s_mul_i32 s63, s{kb_sreg}, {32*1280}
    v_lshlrev_b32 v6, 4, v0""")
    for i in range(10):
        A(f"s_add_u32 s64, s63, {4096*i}\nbuffer_load_dwordx4 v[{16+4*i}:{19+4*i}], v6, s[{SA}:{SA+3}], s64 offen")
    A("s_mov_b32 s64, 0x3333334")
    for i in range(10):
        A(f"""v_add_u32 v7, {256*i}, v0
        v_mul_hi_u32 v8, v7, s64
        v_add_u32 v8, v8, v7
        v_lshlrev_b32 v{60+i}, 4, v8""")
    A("s_barrier")
    for i in range(10):
        A(f"s_waitcnt vmcnt({9-i})\nds_write_b128 v{60+i}, v[{16+4*i}:{19+4*i}]")
    A("s_waitcnt lgkmcnt(0)\ns_barrier")
    A(f"""v_lshrrev_b32 v6, 4, v1
    v_lshlrev_b32 v6, 2, v6
    v_bfe_u32 v7, v1, 2, 2
    v_add_u32 v6, v6, v7
    v_mul_u32_u24 v6, {QT_RS}, v6
    v_and_b32 v7, 3, v1
    v_lshl_add_u32 v6, v7, 3, v6
    s_mul_i32 s64, s{S_WAVE}, 320
    v_add_u32 v6, s64, v6""")
    for n in range(10):
        A(f"""ds_read_b64_tr_b16 v[{16+4*n}:{17+4*n}], v6 offset:{32*n}
        ds_read_b64_tr_b16 v[{18+4*n}:{19+4*n}], v6 offset:{32*n + 16*QT_RS}""")
    A(f"""s_lshl_b32 s64, s{S_WAVE}, 1
    s_mul_i32 s64, s64, 54
    s_add_u32 s64, s64, s{kb_sreg}
    s_mul_i32 s64, s64, {5*1024}
    s_add_u32 s64, s64, {W2P}""")
    for n in range(10):
        if n == 5:
            A(f"s_add_u32 s64, s64, {54*5*1024 - 5*1024}")
        A(f"""s_waitcnt lgkmcnt({min(15, 18 - 2*n)})
        buffer_store_dwordx4 v[{16+4*n}:{19+4*n}], v2, s[{WS}:{WS+3}], s64 offen sc1
        s_add_u32 s64, s64, 1024""")

W1_RS = 128 + 16
def task_w1(A, t_sreg):
    srd(A, SA, P_W1, D_ * F_ * 2)
    A(f"""v_lshrrev_b32 v6, 3, v0
    v_and_b32 v7, 7, v0
    v_mul_u32_u24 v8, {F_*2}, v6
    v_lshl_add_u32 v8, v7, 4, v8
    s_lshl_b32 s63, s{t_sreg}, 7
    v_mul_u32_u24 v9, {W1_RS}, v6
    v_lshl_add_u32 v9, v7, 4, v9""")
    for i in range(20):
        A(f"buffer_load_dwordx4 v[{16+4*i}:{19+4*i}], v8, s[{SA}:{SA+3}], s63 offen\ns_add_u32 s63, s63, {32*F_*2}")
    for i in range(20):
        A(f"s_waitcnt vmcnt({19-i})\nds_write_b128 v9, v[{16+4*i}:{19+4*i}] offset:{(32*W1_RS*i) % 65536 if False else 0}" if False else
          f"s_waitcnt vmcnt({19-i})\nds_write_b128 v9, v[{16+4*i}:{19+4*i}]\nv_add_u32 v9, {32*W1_RS}, v9")
    A("s_waitcnt lgkmcnt(0)\ns_barrier")
    A(f"""v_lshrrev_b32 v6, 4, v1
    v_lshlrev_b32 v6, 2, v6
    v_bfe_u32 v7, v1, 2, 2
    v_add_u32 v6, v6, v7
    v_mul_u32_u24 v6, {W1_RS}, v6
    v_and_b32 v7, 3, v1
    v_lshl_add_u32 v6, v7, 3, v6
    s_lshl_b32 s64, s{S_WAVE}, 5
    v_add_u32 v6, s64, v6""")
    A(f"""s_lshl_b32 s64, s{t_sreg}, 2
    s_add_u32 s64, s64, s{S_WAVE}           ; nb
    s_mul_i32 s65, s64, 9363
    s_lshr_b32 s65, s65, 16
    s_mul_i32 s66, s65, 7
    s_sub_u32 s66, s64, s66                 ; nbl
    s_mul_i32 s65, s65, 140
    s_add_u32 s65, s65, s66
    s_lshl_b32 s65, s65, 10
    s_add_u32 s65, s65, {W1P}""")
    A("v_mov_b32 v100, 0x3f803f80\nv_mov_b32 v101, 0x3f803f80\nv_mov_b32 v102, 0x3f803f80\nv_mov_b32 v103, 0x3f803f80")
    A("v_mov_b32 v104, 0\nv_mov_b32 v105, 0\nv_mov_b32 v106, 0\nv_mov_b32 v107, 0")
    for kb in range(20):
        A(f"""ds_read_b64_tr_b16 v[{16+4*kb}:{17+4*kb}], v6
        ds_read_b64_tr_b16 v[{18+4*kb}:{19+4*kb}], v6 offset:{16*W1_RS}
        v_add_u32 v6, {32*W1_RS}, v6""")
        if kb >= 4:
            k2 = kb - 4
            A(f"""s_waitcnt lgkmcnt(8)
            buffer_store_dwordx4 v[{16+4*k2}:{19+4*k2}], v2, s[{WS}:{WS+3}], s65 offen sc1
            s_add_u32 s65, s65, {7*1024}
            v_mfma_f32_16x16x32_bf16 v[104:107], v[{16+4*k2}:{19+4*k2}], v[100:103], v[104:107]""")
    A("s_waitcnt lgkmcnt(0)")
    for k2 in range(16, 20):
        A(f"""buffer_store_dwordx4 v[{16+4*k2}:{19+4*k2}], v2, s[{WS}:{WS+3}], s65 offen sc1
        s_add_u32 s65, s65, {7*1024}
        v_mfma_f32_16x16x32_bf16 v[104:107], v[{16+4*k2}:{19+4*k2}], v[100:103], v[104:107]""")
    A(f"""s_lshl_b32 s64, s64, 6
    s_add_u32 s64, s64, {CS}
    v_lshrrev_b32 v6, 4, v1
    v_lshlrev_b32 v6, 4, v6
    v_and_b32 v7, 15, v1
    v_cmp_eq_u32 vcc, 0, v7
    s_nop 4
    s_and_saveexec_b64 s[98:99], vcc
    buffer_store_dwordx4 v[104:107], v6, s[{WS}:{WS+3}], s64 offen sc1
    s_mov_b64 exec, s[98:99]""")
```

```python
from emit import *

S_, D_, F_ = 2048, 640, 1728
KN = "interleave_layers__ssm_conv_h3__dense_activation_relu__prompt_kernel"

CTRL = 0x0000000
KVT  = 0x0008000
YQ   = KVT + 0x280000
X1Q  = YQ + 0x280000
PXR  = X1Q + 0x280000
PST1 = PXR
PST2 = PST1 + 2 * 64 * 20 * 256
assert PST2 + 64 * 16 * 256 <= PXR + 64 * 16384
QQ   = PXR + 64 * 16384
X3Q  = QQ
ST0  = QQ + 0x280000 + 0x10000
CS   = ST0 + 0x4000
W1P  = CS + 0x2000
W2P  = W1P + 16 * 140 * 1024
H1Q  = W2P + 8 * 270 * 1024 + 0x4000
H2Q  = H1Q
WS_END = H2Q + 64 * 108 * 1024 + 0x10000
STAMPS = 0x3000000
assert WS_END < STAMPS
assert all(x % 128 == 0 for x in (KVT, QQ, YQ, X1Q, X3Q, ST0, CS, PST1, PST2, W1P, W2P, H1Q, H2Q))

C_Q    = 0
C_W1   = 4
C_W2   = 6
C_PX   = 8
C_P2   = 16
C_KV   = 32
C_CONV = 48
C_H    = 64
C_X3   = 80
N_CNT  = 96

P_Q, P_K, P_V, P_SK, P_SSM, P_D, P_X, P_W1, P_W2, P_OUT, P_DBG, P_WS = [36 + 2 * i for i in range(12)]
WS = 8
SA, SB, SC, SD = 12, 16, 20, 24
DBG = 28
RET = 32
S_WAVE = 60
S_WG = 61
S_SPIN = 97
SPIN_MAX = 1 << 20

def srd(A, dst, ptr, nbytes):
    A(f"""s_mov_b32 s{dst}, s{ptr}
    s_mov_b32 s{dst+1}, s{ptr+1}
    s_mov_b32 s{dst+2}, {nbytes}
    s_mov_b32 s{dst+3}, 0x20000""")

def prologue(A, nwg=256, exit_label="L_exit"):
    A(f"""s_cmp_ge_u32 s2, {nwg}
    s_cbranch_scc1 {exit_label}
    s_load_dwordx16 s[36:51], s[0:1], 0
    s_load_dwordx8 s[52:59], s[0:1], 64
    v_lshrrev_b32 v3, 6, v0
    v_and_b32 v1, 63, v0
    v_readfirstlane_b32 s{S_WAVE}, v3
    v_lshlrev_b32 v2, 4, v1
    s_mov_b32 s{S_WG}, s2
    s_mov_b32 s{S_SPIN}, {SPIN_MAX}
    s_waitcnt lgkmcnt(0)""")
    srd(A, WS, P_WS, 0x10000000)
    srd(A, DBG, P_DBG, 256)

def head(label):
    return f""".text
.globl {label}
.p2align 8
.type {label},@function
{label}:
"""

def desc(label, vgpr=512, accum=256, sgpr=102):
    return f"""
.section .rodata,"a"
.p2align 6
.amdhsa_kernel {label}
  .amdhsa_next_free_vgpr {vgpr}
  .amdhsa_next_free_sgpr {sgpr}
  .amdhsa_accum_offset {accum}
  .amdhsa_group_segment_fixed_size 0
  .amdhsa_kernarg_size 96
  .amdhsa_user_sgpr_count 2
  .amdhsa_user_sgpr_kernarg_segment_ptr 1
  .amdhsa_system_sgpr_workgroup_id_x 1
  .amdhsa_float_denorm_mode_32 3
.end_amdhsa_kernel
.text
"""

def arrive(A, cnt, srd_=WS, vt=4):
    lab = A.newlabel("arr")
    A(f"""s_cmp_lg_u32 s{S_WAVE}, 0
    s_cbranch_scc1 {lab}
    s_mov_b64 s[98:99], exec
    s_mov_b64 exec, 1
    v_mov_b32 v{vt}, {cnt}
    v_mov_b32 v{vt+1}, 1
    buffer_atomic_add v{vt+1}, v{vt}, s[{srd_}:{srd_+3}], 0 offen
    s_mov_b64 exec, s[98:99]""")
    A.label(lab)

def signal(A, cnt, srd_=WS, vt=4):
    A("s_waitcnt vmcnt(0)\ns_barrier")
    arrive(A, cnt, srd_, vt)

def cnt_off(idx): return CTRL + idx * 128

def poll_addr(A, va, first_off, n, stride_log2=7):
    if n == 1:
        A(f"v_mov_b32 v{va}, {first_off}")
        return
    A(f"""v_and_b32 v{va}, {n-1}, v1
    v_lshlrev_b32 v{va}, {stride_log2}, v{va}
    v_add_u32 v{va}, {first_off}, v{va}""")

def poll_issue(A, vd, va, srd_=WS):
    A(f"buffer_load_dword v{vd}, v{va}, s[{srd_}:{srd_+3}], 0 offen sc1")

def poll_ensure(A, vd, va, target, srd_=WS):
    chk = A.newlabel("pe"); ok = A.newlabel("pok")
    A.label(chk)
    A(f"""v_cmp_gt_u32 vcc, {target}, v{vd}
    s_nop 1
    s_cbranch_vccz {ok}
    s_cmp_eq_u32 s{S_SPIN}, 0
    s_cbranch_scc1 {ok}
    s_sub_u32 s{S_SPIN}, s{S_SPIN}, 1
    s_sleep 1
    buffer_load_dword v{vd}, v{va}, s[{srd_}:{srd_+3}], 0 offen sc1
    s_waitcnt vmcnt(0)
    s_branch {chk}""")
    A.label(ok)

def wait_cnt_wg(A, off_sreg, target, va=4):
    lab = A.newlabel("wc")
    A(f"s_cmp_lg_u32 s{S_WAVE}, 0\ns_cbranch_scc1 {lab}\nv_mov_b32 v{va}, s{off_sreg}")
    poll_issue(A, va + 1, va)
    A("s_waitcnt vmcnt(0)")
    poll_ensure(A, va + 1, va, target)
    A.label(lab)
    A("s_barrier")

def wait_flag_wg(A, first_off, n, target, va=4, srd_=WS, stride_log2=7):
    lab = A.newlabel("wf")
    A(f"s_cmp_lg_u32 s{S_WAVE}, 0\ns_cbranch_scc1 {lab}")
    wait_flag(A, first_off, n, target, va, srd_, stride_log2)
    A.label(lab)
    A("s_barrier")

def wait_flag(A, first_off, n, target, va=4, srd_=WS, stride_log2=7):
    poll_addr(A, va, first_off, n, stride_log2)
    poll_issue(A, va + 1, va, srd_)
    A("s_waitcnt vmcnt(0)")
    poll_ensure(A, va + 1, va, target, srd_)

def any_poison(A, regs, t):
    regs = list(regs)
    A(f"v_max3_u32 v{t}, v{regs[0]}, v{regs[1]}, v{regs[2]}")
    i = 3
    while i + 1 < len(regs):
        A(f"v_max3_u32 v{t}, v{t}, v{regs[i]}, v{regs[i+1]}")
        i += 2
    if i < len(regs):
        A(f"v_max_u32 v{t}, v{t}, v{regs[i]}")
    A(f"v_cmp_eq_u32 vcc, -1, v{t}")

def any_poison_list(regs, t):
    regs = list(regs); out = [f"v_max3_u32 v{t}, v{regs[0]}, v{regs[1]}, v{regs[2]}"]
    i = 3
    while i + 1 < len(regs):
        out.append(f"v_max3_u32 v{t}, v{t}, v{regs[i]}, v{regs[i+1]}"); i += 2
    if i < len(regs): out.append(f"v_max_u32 v{t}, v{t}, v{regs[i]}")
    out.append(f"v_cmp_eq_u32 vcc, -1, v{t}")
    return out

def load_validated(A, loads, regs, t):
    top = A.newlabel("lv"); ok = A.newlabel("lvok")
    A.label(top)
    for l in loads: A(l)
    A("s_waitcnt vmcnt(0)")
    any_poison(A, regs, t)
    A(f"""s_nop 1
    s_cbranch_vccz {ok}
    s_cmp_eq_u32 s{S_SPIN}, 0
    s_cbranch_scc1 {ok}
    s_sub_u32 s{S_SPIN}, s{S_SPIN}, 1
    s_sleep 1
    s_branch {top}""")
    A.label(ok)

def revalidate(A, loads, regs, t):
    chk = A.newlabel("rv"); ok = A.newlabel("rvok")
    A.label(chk)
    any_poison(A, regs, t)
    A(f"""s_nop 1
    s_cbranch_vccz {ok}
    s_cmp_eq_u32 s{S_SPIN}, 0
    s_cbranch_scc1 {ok}
    s_sub_u32 s{S_SPIN}, s{S_SPIN}, 1
    s_sleep 1""")
    for l in loads: A(l)
    A(f"s_waitcnt vmcnt(0)\ns_branch {chk}")
    A.label(ok)

def poison_regs(A, r):
    for i in range(4): A(f"v_mov_b32 v{r+i}, -1")

STAMP_ON = [False]
def stamp(A, i):
    if not STAMP_ON[0]: return
    A(f"""s_memrealtime s[94:95]
    s_memtime s[100:101]
    s_waitcnt lgkmcnt(0)
    v_writelane_b32 v13, s94, {i}
    v_writelane_b32 v14, s100, {i}""")

def stamp_init(A):
    if not STAMP_ON[0]: return
    A("v_mov_b32 v13, 0\nv_mov_b32 v14, 0")

DBG_STAMPS = [None]
def stamp_flush(A):
    if not STAMP_ON[0]: return
    if DBG_STAMPS[0]:
        wg, idx = DBG_STAMPS[0]
        lab = A.newlabel("dst")
        A(f"""s_cmp_lg_u32 s{S_WG}, {wg}
        s_cbranch_scc1 {lab}
        s_cmp_lg_u32 s{S_WAVE}, 0
        s_cbranch_scc1 {lab}
        v_readlane_b32 s62, v13, 0""")
        for j, i in enumerate(idx):
            A(f"""v_readlane_b32 s63, v13, {i}
            s_nop 3
            s_sub_u32 s63, s63, s62
            v_mov_b32 v16, s63
            v_mov_b32 v17, {4*(j+1)}
            s_mov_b64 exec, 1
            buffer_store_dword v16, v17, s[{DBG}:{DBG+3}], 0 offen
            s_mov_b64 exec, -1""")
        A.label(lab)
    lab = A.newlabel("stf")
    A(f"""s_cmp_lg_u32 s{S_WAVE}, 0
    s_cbranch_scc1 {lab}
    s_lshl_b32 s96, s{S_WG}, 8
    s_add_u32 s96, s96, {STAMPS}
    v_lshlrev_b32 v15, 3, v1
    v_mov_b32 v16, v13
    v_mov_b32 v17, v14
    s_mov_b32 exec_hi, 0
    buffer_store_dwordx2 v[16:17], v15, s[{WS}:{WS+3}], s96 offen""")
    A.label(lab)

def canary_wait(A, va, vd):
    top = A.newlabel("cw"); ok = A.newlabel("cwok")
    A.label(top)
    A(f"""buffer_load_dword v{vd}, v{va}, s[{WS}:{WS+3}], 0 offen sc1
    s_waitcnt vmcnt(0)
    v_cmp_eq_u32 vcc, -1, v{vd}
    s_nop 1
    s_cbranch_vccz {ok}
    s_cmp_eq_u32 s{S_SPIN}, 0
    s_cbranch_scc1 {ok}
    s_sub_u32 s{S_SPIN}, s{S_SPIN}, 1
    s_branch {top}""")
    A.label(ok)

def wait_init(A):
    poll_addr(A, 4, 0, 1)
    poll_issue(A, 5, 4, DBG)
    A("s_waitcnt vmcnt(0)")
    poll_ensure(A, 5, 4, 1, DBG)

def flag_set(A, off_sreg, vt=6):
    A(f"""s_waitcnt vmcnt(0)
    s_mov_b64 s[98:99], exec
    s_mov_b64 exec, 1
    v_mov_b32 v{vt}, 0
    v_mov_b32 v{vt+1}, 1
    buffer_store_dword v{vt+1}, v{vt}, s[{WS}:{WS+3}], s{off_sreg} offen sc1
    s_mov_b64 exec, s[98:99]""")

def flag_wait(A, va, vd):
    top = A.newlabel("fw"); ok = A.newlabel("fwok")
    A.label(top)
    A(f"""buffer_load_dword v{vd}, v{va}, s[{WS}:{WS+3}], 0 offen sc1
    s_waitcnt vmcnt(0)
    v_cmp_eq_u32 vcc, 0, v{vd}
    s_nop 1
    s_cbranch_vccz {ok}
    s_cmp_eq_u32 s{S_SPIN}, 0
    s_cbranch_scc1 {ok}
    s_sub_u32 s{S_SPIN}, s{S_SPIN}, 1
    s_branch {top}""")
    A.label(ok)
```

```python
from common import *

TK_CS = 4160
TK_WS = 4 * TK_CS
TK = 143360 - 4 * TK_WS
U_S = 4576
U = 143360
assert U + 4 * U_S <= 163840
SSM = 200

def conv_issue_ssm(A):
    srd(A, SD, P_SSM, D_ * S_ * 2)
    A(f"""s_lshl_b32 s68, s{S_WG}, 2
    s_add_u32 s68, s68, s{S_WAVE}          ; channel d
    s_lshl_b32 s69, s68, 12""")
    for r in range(4):
        for x in range(3):
            A(f"buffer_load_dwordx4 v[{SSM+12*r+4*x}:{SSM+12*r+4*x+3}], v2, s[{SD}:{SD+3}], s69 offen offset:{1024*r+4*x}")
    A(f"""s_lshl_b32 s70, s68, 1
    s_and_b32 s70, s70, 0xfffffffc
    s_add_u32 s72, s{P_D}, s70
    s_addc_u32 s73, s{P_D+1}, 0
    s_load_dword s71, s[72:73], 0""")

def conv_build(A, pending_after):
    A(f"""s_mul_i32 s72, s{S_WAVE}, {TK_WS}
    s_add_u32 s72, s72, {TK}
    v_add_u32 v6, s72, v2""")
    if pending_after is not None:
        A(f"s_waitcnt vmcnt({pending_after})")
    T = 16
    for r in range(4):
        L0, L1, L2 = SSM + 12 * r, SSM + 12 * r + 4, SSM + 12 * r + 8
        for i in range(4):
            A(f"v_alignbit_b32 v{T+i}, v{L1+i}, v{L0+i}, 16")
        for i in range(4):
            A(f"v_alignbit_b32 v{T+4+i}, v{L2+i}, v{L1+i}, 16")
        off = 32 + 1024 * r
        A(f"""ds_write_b128 v6, v[{L0}:{L0+3}] offset:{off}
        ds_write_b128 v6, v[{T}:{T+3}] offset:{off + TK_CS}
        ds_write_b128 v6, v[{L1}:{L1+3}] offset:{off + 2*TK_CS}
        ds_write_b128 v6, v[{T+4}:{T+7}] offset:{off + 3*TK_CS}""")
        T = 40 - T
    d0, d1 = SSM, SSM + 1
    A(f"""v_mov_b32 v32, 0
    v_mov_b32 v33, 0
    v_mov_b32 v34, 0
    v_mov_b32 v35, 0
    v_mov_b32 v36, 0
    v_mov_b32 v37, 0
    v_mov_b32 v38, 0
    v_lshlrev_b32 v39, 16, v{d0}
    v_mov_b32 v40, 0
    v_mov_b32 v41, 0
    v_mov_b32 v42, 0
    v_mov_b32 v43, v{d0}
    v_mov_b32 v44, 0
    v_mov_b32 v45, 0
    v_lshlrev_b32 v46, 16, v{d0}
    v_alignbit_b32 v47, v{d1}, v{d0}, 16
    s_mov_b64 s[98:99], exec
    s_mov_b64 exec, 1""")
    for sg in range(4):
        A(f"ds_write_b128 v6, v[32:35] offset:{sg*TK_CS}")
        A(f"ds_write_b128 v6, v[{32+4*sg}:{35+4*sg}] offset:{sg*TK_CS + 16}")
    A(f"""s_mov_b64 exec, 0x3fffffff
    s_mul_i32 s72, s{S_WAVE}, {U_S}
    s_add_u32 s72, s72, {U + 4096}
    v_add_u32 v7, s72, v2
    ds_write_b128 v7, v[32:35]
    s_mov_b64 exec, s[98:99]""")

def conv_load_u(A):
    A(f"""s_lshl_b32 s72, s{S_WG}, 14
    s_add_u32 s72, s72, {KVT}
    s_add_u32 s73, s72, 4096
    s_add_u32 s62, s72, 8192
    s_add_u32 s63, s72, 12288
    v_lshlrev_b32 v6, 4, v0
    v_and_b32 v7, 3, v0
    v_mul_u32_u24 v7, {U_S}, v7
    v_lshrrev_b32 v8, 2, v0
    v_lshl_add_u32 v7, v8, 4, v7
    v_add_u32 v7, {U}, v7""")
    for i, r in enumerate((72, 73, 62, 63)):
        A(f"buffer_load_dwordx4 v[{16+4*i}:{19+4*i}], v6, s[{WS}:{WS+3}], s{r} offen sc1")
    for i in range(4):
        A(f"s_waitcnt vmcnt({3-i})\nds_write_b128 v7, v[{16+4*i}:{19+4*i}] offset:{1024*i}")

ACC = 16
FA = [48, 80]
FB = [112, 144]
VA, VB = 8, 9

def conv_main(A, hooks=None):
    hooks = hooks or {}
    A(f"""v_and_b32 v6, 15, v1
    v_lshrrev_b32 v7, 4, v1
    v_lshl_add_u32 v10, v7, 3, v6
    v_add_u32 v10, 1, v10
    v_and_b32 v11, 3, v10
    v_mul_u32_u24 v11, {TK_CS}, v11
    v_lshrrev_b32 v10, 2, v10
    v_lshl_add_u32 v11, v10, 3, v11
    s_mul_i32 s72, s{S_WAVE}, {TK_WS}
    s_add_u32 s72, s72, {TK}
    v_add_u32 v{VA}, s72, v11
    v_lshlrev_b32 v10, 5, v6
    v_lshlrev_b32 v11, 4, v7
    v_sub_u32 v11, v11, v10
    s_mul_i32 s72, s{S_WAVE}, {U_S}
    s_add_u32 s72, s72, {U + 480}
    v_add_u32 v{VB}, s72, v11""")
    for i in range(32):
        A(f"v_mov_b32 v{ACC+i}, 0")
    def reads(setidx, r):
        out = []
        for x in range(8):
            out.append(f"ds_read_b64 v[{FA[setidx]+4*x}:{FA[setidx]+4*x+1}], v{VA} offset:{64*r + 512*x}")
            out.append(f"ds_read_b64 v[{FA[setidx]+4*x+2}:{FA[setidx]+4*x+3}], v{VA} offset:{64*r + 512*x + 8}")
            out.append(f"ds_read_b128 v[{FB[setidx]+4*x}:{FB[setidx]+4*x+3}], v{VB} offset:{64*r + 512*(7-x)}")
        return out
    for ln in reads(0, 0):
        A(ln)
    for r in range(8):
        cur = r & 1
        nxt = reads(1 - cur, r + 1) if r < 7 else []
        A("s_waitcnt lgkmcnt(0)")
        if ("pre", r) in hooks: hooks[("pre", r)](A)
        extra = list(hooks.get(("fill", r), []))
        k = 0
        for a_ in range(8):
            for b in range(8 - a_):
                n = a_ + b
                A(f"v_mfma_f32_16x16x32_bf16 v[{ACC+4*n}:{ACC+4*n+3}], v[{FA[cur]+4*a_}:{FA[cur]+4*a_+3}], v[{FB[cur]+4*b}:{FB[cur]+4*b+3}], v[{ACC+4*n}:{ACC+4*n+3}]")
                if k < len(nxt):
                    A(nxt[k])
                elif extra:
                    A(extra.pop(0))
                k += 1
        assert not extra

def conv_epilogue_loads(A):
    A(f"""v_lshrrev_b32 v10, 4, v1
    v_mul_u32_u24 v10, {40*1024}, v10
    v_and_b32 v11, 15, v1
    v_lshl_add_u32 v12, v11, 4, v10
    s_lshr_b32 s72, s{S_WG}, 2               ; nb
    s_and_b32 s73, s{S_WG}, 3                ; g
    s_lshl_b32 s72, s72, 10
    s_lshl_b32 s73, s73, 8
    s_add_u32 s72, s72, s73
    s_mul_i32 s73, s{S_WAVE}, {16*40*1024}   ; G = 4w + i -> rb32 = 4G
    s_add_u32 s74, s72, s73
    s_add_u32 s72, s74, {QQ}
    s_lshl_b32 s73, s{S_WAVE}, 12
    s_add_u32 s73, s73, {ST0}""")
    for i in range(4):
        A(f"""buffer_load_dwordx4 v[{176+4*i}:{179+4*i}], v12, s[{WS}:{WS+3}], s72 offen sc1
        buffer_load_dwordx4 v[{192+4*i}:{195+4*i}], v2, s[{WS}:{WS+3}], s73 offen sc1
        s_add_u32 s72, s72, {4*40*1024}
        s_add_u32 s73, s73, 1024""")

def conv_epilogue(A, after_ty=None, after_reads=None):
    A(f"""s_waitcnt lgkmcnt(0)
    s_and_b32 s72, s68, 1
    s_lshl_b32 s72, s72, 4
    s_lshr_b32 s71, s71, s72
    s_lshl_b32 s71, s71, 16
    v_and_b32 v6, 15, v1                    ; c
    v_lshrrev_b32 v7, 4, v1                 ; g
    v_lshlrev_b32 v10, 5, v6
    v_lshl_add_u32 v10, v7, 3, v10          ; 32c + 8g
    s_mul_i32 s72, s{S_WAVE}, {U_S}
    s_add_u32 s72, s72, {U + 504}
    v_sub_u32 v10, s72, v10                 ; u address
    v_lshlrev_b32 v11, 4, v6
    v_lshl_add_u32 v11, v7, 2, v11          ; 16c + 4g
    s_mul_i32 s72, s{S_WAVE}, {TK_WS + 64}
    s_add_u32 s72, s72, {TK}
    v_add_u32 v11, s72, v11""")
    for n in range(8):
        A(f"ds_read_b64 v[{48+2*n}:{49+2*n}], v10 offset:{512*(7-n)}")
    for n in range(8):
        d0, d1 = 48 + 2 * n, 49 + 2 * n
        c = ACC + 4 * n
        A(f"""s_waitcnt lgkmcnt({7-n})
        v_and_b32 v64, 0xffff0000, v{d1}
        v_lshlrev_b32 v65, 16, v{d1}
        v_and_b32 v66, 0xffff0000, v{d0}
        v_lshlrev_b32 v67, 16, v{d0}
        v_fmac_f32 v{c}, s71, v64
        v_fmac_f32 v{c+1}, s71, v65
        v_fmac_f32 v{c+2}, s71, v66
        v_fmac_f32 v{c+3}, s71, v67
        v_cvt_pk_bf16_f32 v{68+2*n}, v{c}, v{c+2}
        v_cvt_pk_bf16_f32 v{69+2*n}, v{c+1}, v{c+3}""")
    for n in range(8):
        A(f"""ds_write_b32 v11, v{68+2*n} offset:{256*n}
        ds_write_b32 v11, v{69+2*n} offset:{256*n + 2048}""")
    A("s_waitcnt lgkmcnt(0)\ns_barrier")
    if after_ty: after_ty(A)
    A(f"""v_bfe_u32 v10, v1, 2, 2
    v_mul_u32_u24 v10, {TK_WS + 64}, v10
    v_lshrrev_b32 v11, 4, v1
    v_lshl_add_u32 v10, v11, 5, v10
    v_and_b32 v11, 3, v1
    v_lshl_add_u32 v10, v11, 3, v10
    s_lshl_b32 s72, s{S_WAVE}, 9             ; G0 = 4w -> 128*G0 bytes
    s_add_u32 s72, s72, {TK}
    v_add_u32 v10, s72, v10""")
    for i in range(4):
        A(f"""ds_read_b64_tr_b16 v[{96+4*i}:{97+4*i}], v10 offset:{128*i}
        ds_read_b64_tr_b16 v[{98+4*i}:{99+4*i}], v10 offset:{128*i + 2048}""")
    A(f"""s_add_u32 s72, s74, {YQ}
    s_add_u32 s73, s74, {X1Q}
    s_waitcnt lgkmcnt(0)""")
    if after_reads: after_reads(A)
    for i in range(4):
        y = 96 + 4 * i; q = 176 + 4 * i; st = 192 + 4 * i; o = 128 + 4 * i
        A(f"buffer_store_dwordx4 v[{y}:{y+3}], v12, s[{WS}:{WS+3}], s72 offen sc1")
        A(f"""v_mul_f32 v64, v{st}, v{st+1}
        v_mul_f32 v65, v{st+2}, v{st+3}""")
        for h in range(2):
            r_, mr = st + 1 + 2 * h, 64 + h
            for d in range(2):
                yy, qq = y + 2 * h + d, q + 2 * h + d
                A(f"""v_lshlrev_b32 v66, 16, v{qq}
                v_and_b32 v67, 0xffff0000, v{qq}
                v_lshlrev_b32 v68, 16, v{yy}
                v_and_b32 v69, 0xffff0000, v{yy}
                v_fma_f32 v70, v66, v{r_}, -v{mr}
                v_fma_f32 v71, v67, v{r_}, -v{mr}
                v_fmac_f32 v66, v70, v68
                v_fmac_f32 v67, v71, v69
                v_cvt_pk_bf16_f32 v{o+2*h+d}, v66, v67""")
        A(f"""buffer_store_dwordx4 v[{o}:{o+3}], v12, s[{WS}:{WS+3}], s73 offen sc1
        s_add_u32 s72, s72, {4*40*1024}
        s_add_u32 s73, s73, {4*40*1024}""")
```

```python
from common import *
from p0 import f2u

S_CL, S_CT, S_RT2, S_CT2 = 76, 77, 78, 79
S_X, S_H, S_LAYER = 80, 81, 82
S_RB = 83
S_RBO = 84
S_ODD = 85
S_TA, S_TB, S_TN = 34, 35, 75

RED = 143360

def ffn_ids(A):
    A(f"""s_and_b32 s62, s{S_WG}, 7              ; xcd
    s_lshr_b32 s63, s{S_WG}, 3               ; j
    s_lshr_b32 s64, s63, 4
    s_lshl_b32 s65, s62, 1
    s_add_u32 s{S_CL}, s65, s64
    s_and_b32 s{S_CT}, s63, 15
    s_lshr_b32 s64, s63, 3
    s_lshl_b32 s65, s62, 2
    s_add_u32 s{S_RT2}, s65, s64
    s_and_b32 s{S_CT2}, s63, 7
    s_lshl_b32 s64, s{S_CL}, 2
    s_add_u32 s{S_RB}, s64, s{S_WAVE}
    s_and_b32 s{S_ODD}, s{S_WAVE}, 1
    s_lshr_b32 s64, s{S_WAVE}, 1
    s_lshl_b32 s65, s{S_RT2}, 1
    s_add_u32 s{S_RBO}, s65, s64
    s_mul_i32 s62, s{S_RBO}, 40
    s_mul_i32 s63, s{S_CT2}, 5
    s_add_u32 s62, s62, s63
    s_mul_i32 s63, s{S_ODD}, 3
    s_add_u32 s62, s62, s63
    s_lshl_b32 s92, s62, 10""")

def w1_dma(A):
    lab = A.newlabel("dma")
    A(f"""s_cmp_eq_u32 s{S_WAVE}, 0
    s_cbranch_scc1 {lab}
    s_sub_u32 s63, s{S_WAVE}, 1
    s_mul_i32 s63, s63, {47*1024}
    s_mul_i32 s62, s{S_CT}, {140*1024}
    s_add_u32 s62, s62, s63
    s_add_u32 s62, s62, {W1P}""")
    for i in range(47):
        if i % 4 == 0:
            if i: A("s_add_u32 s62, s62, 4096\ns_add_u32 s63, s63, 4096")
            A("s_mov_b32 m0, s63\ns_nop 0")
        A(f"buffer_load_dwordx4 v2, s[{WS}:{WS+3}], s62 offen offset:{1024*(i%4)} sc1 lds")
    A.label(lab)

W2V = 232
def w2reg(f):
    return f"a[{4*f}:{4*f+3}]" if f < 64 else f"v[{W2V+4*(f-64)}:{W2V+4*(f-64)+3}]"

def w2_bases(A):
    A(f"""s_mul_i32 s62, s{S_WAVE}, 14
    s_cmp_ge_u32 s{S_WAVE}, 3
    s_cselect_b32 s63, 1, 0
    s_sub_u32 s62, s62, s63                  ; kb0 = 0,14,28,41
    s_mul_i32 s63, s{S_CT2}, 54
    s_add_u32 s62, s62, s63
    s_mul_i32 s62, s62, {5*1024}
    s_add_u32 s62, s62, {W2P}
    s_mul_i32 s63, s{S_ODD}, 3072
    s_add_u32 s86, s62, s63
    s_sub_u32 s63, 1, s{S_ODD}
    s_lshl_b32 s63, s63, 11
    s_add_u32 s87, s62, s63""")

def w2_load(f):
    n = f % 5
    sb, off = (86, 1024 * n) if n < 2 else (87, 1024 * (n - 2))
    ln = f"buffer_load_dwordx4 {w2reg(f)}, v2, s[{WS}:{WS+3}], s{sb} offen offset:{off} sc1"
    if n == 4: ln += "\ns_add_u32 s86, s86, 5120\ns_add_u32 s87, s87, 5120"
    return ln

def interleave(A, mfmas, fillers):
    for k, m in enumerate(mfmas):
        A(m)
        for f in fillers.get(k, []):
            A(f)

def red_g(A, regs, t):
    for i, r in enumerate(regs): A(f"v_mov_b32 v{t+i}, v{r}")
    if len(regs) < 2: A("s_nop 0")
    A("s_nop 0")
    for i, r in enumerate(regs): A(f"v_permlane32_swap_b32 v{r}, v{t+i}")
    for i, r in enumerate(regs): A(f"v_add_f32 v{r}, v{r}, v{t+i}")
    for i, r in enumerate(regs): A(f"v_mov_b32 v{t+i}, v{r}")
    A("s_nop 1")
    for i, r in enumerate(regs): A(f"v_permlane16_swap_b32 v{r}, v{t+i}")
    for i, r in enumerate(regs): A(f"v_add_f32 v{r}, v{r}, v{t+i}")

G1_ACC, G1_W, G1_X = 16, [72, 100], 128
G1_D = 10
def g1_acc(p, n): return G1_ACC + 4 * (7 * p + n)
def g1_xl(slot, sreg):
    x = G1_X + 8 * slot
    return [f"buffer_load_dwordx4 v[{x}:{x+3}], v2, s[{WS}:{WS+3}], s{sreg} offen sc1",
            f"buffer_load_dwordx4 v[{x+4}:{x+7}], v2, s[{WS}:{WS+3}], s{sreg} offen offset:1024 sc1"]

def g1_issue(A):
    A(f"""s_mul_i32 s88, s{S_RB}, {40*1024}
    s_add_u32 s88, s88, s{S_X}
    s_lshl_b32 s62, s{S_CT}, 11
    s_add_u32 s64, s62, s88
    s_add_u32 s65, s64, {16*2048}
    s_cmp_lt_u32 s{S_CT}, 4
    s_cselect_b32 s65, s65, s64""")
    for l in g1_stat_loads(): A(l)
    for kk in range(G1_D):
        for l in g1_xl(kk, 88): A(l)
        A("s_add_u32 s88, s88, 2048")

def g1_stat_loads():
    return [f"buffer_load_dwordx4 v[208:211], v2, s[{WS}:{WS+3}], s64 offen sc1",
            f"buffer_load_dwordx4 v[212:215], v2, s[{WS}:{WS+3}], s64 offen offset:1024 sc1",
            f"buffer_load_dwordx4 v[216:219], v2, s[{WS}:{WS+3}], s65 offen sc1",
            f"buffer_load_dwordx4 v[220:223], v2, s[{WS}:{WS+3}], s65 offen offset:1024 sc1"]

def g1_stats_publish(A):
    A(f"s_waitcnt vmcnt({2*G1_D})")
    A("s_mov_b32 s62, 0x3f803f80")
    def stat(base, o):
        A(f"v_mov_b32 v{o}, 0\nv_mov_b32 v{o+1}, 0\nv_mov_b32 v{o+2}, 0\nv_mov_b32 v{o+3}, 0")
        for blk in range(2):
            r = base + 4 * blk
            A(f"""v_dot2_f32_bf16 v{o}, v{r}, s62, v{o}
            v_dot2_f32_bf16 v{o+1}, v{r}, v{r}, v{o+1}
            v_dot2_f32_bf16 v{o+2}, v{r+2}, s62, v{o+2}
            v_dot2_f32_bf16 v{o+3}, v{r+2}, v{r+2}, v{o+3}
            v_dot2_f32_bf16 v{o}, v{r+1}, s62, v{o}
            v_dot2_f32_bf16 v{o+1}, v{r+1}, v{r+1}, v{o+1}
            v_dot2_f32_bf16 v{o+2}, v{r+3}, s62, v{o+2}
            v_dot2_f32_bf16 v{o+3}, v{r+3}, v{r+3}, v{o+3}""")
    stat(208, 224)
    stat(216, 228)
    A("s_nop 1")
    red_g(A, list(range(224, 232)), 208)
    lab = A.newlabel("st2")
    A(f"""s_mul_i32 s62, s{S_LAYER}, {64*20*256}
    s_mul_i32 s63, s{S_RB}, {20*256}
    s_add_u32 s62, s62, s63
    s_add_u32 s89, s62, {PST1}
    s_lshl_b32 s63, s{S_CT}, 8
    s_add_u32 s62, s89, s63
    s_mov_b64 s[98:99], exec
    s_mov_b64 exec, 0xffff
    buffer_store_dwordx4 v[224:227], v2, s[{WS}:{WS+3}], s62 offen sc1
    s_add_u32 s62, s62, {16*256}
    s_cmp_ge_u32 s{S_CT}, 4
    s_cbranch_scc1 {lab}
    buffer_store_dwordx4 v[228:231], v2, s[{WS}:{WS+3}], s62 offen sc1""")
    A.label(lab)
    A("s_mov_b64 exec, s[98:99]")

def gather_loads(base_sreg, nm, T):
    out = []
    for m in range(nm):
        if m < 4: out.append(f"buffer_load_dwordx4 v[{T+4*m}:{T+4*m+3}], v8, s[{WS}:{WS+3}], s{base_sreg} offen offset:{1024*m} sc1")
        else: out.append(f"buffer_load_dwordx4 v[{T+4*m}:{T+4*m+3}], v8, s[{WS}:{WS+3}], s93 offen sc1")
    return out

def gather_addr():
    return ["v_and_b32 v8, 15, v1", "v_lshrrev_b32 v9, 4, v1", "v_lshlrev_b32 v9, 8, v9", "v_lshl_add_u32 v8, v8, 4, v9"]

def gather_finish(A, nm, T, out, n_elems, tmp):
    for m in range(1, nm):
        for c in range(4):
            A(f"v_add_f32 v{T+c}, v{T+c}, v{T+4*m+c}")
    red_g(A, [T, T + 1, T + 2, T + 3], tmp)
    inv = hex(f2u(1.0 / n_elems)); eps = hex(f2u(1e-5))
    for h in range(2):
        sm, sq = T + 2 * h, T + 2 * h + 1
        A(f"""v_mul_f32 v{out+2*h}, {inv}, v{sm}
        v_mul_f32 v{sq}, {inv}, v{sq}""")
    for h in range(2):
        sq = T + 2 * h + 1
        A(f"v_fma_f32 v{sq}, -v{out+2*h}, v{out+2*h}, v{sq}")
    for h in range(2):
        sq = T + 2 * h + 1
        A(f"v_max_f32 v{sq}, 0, v{sq}\nv_add_f32 v{sq}, {eps}, v{sq}")
    for h in range(2):
        A(f"v_rsq_f32 v{out+2*h+1}, v{T+2*h+1}")
    A("s_nop 0")

G1_GT = 208
def g1_main(A, w2_loads=0):
    A(f"""v_mov_b32 v3, v2
    v_add_u32 v4, {9*7168}, v2
    v_add_u32 v5, {18*7168}, v2""")
    def wreads(kk):
        out = []
        base, o = (3, kk) if kk < 9 else ((4, kk - 9) if kk < 18 else (5, kk - 18))
        for n in range(7):
            r = G1_W[kk & 1] + 4 * n
            out.append(f"ds_read_b128 v[{r}:{r+3}], v{base} offset:{o*7168 + 1024*n}")
        return out
    def swaps(kk):
        x = G1_X + 8 * (kk % G1_D)
        return [f"v_swap_b32 v{x+2}, v{x+4}", f"v_swap_b32 v{x+3}, v{x+5}"]
    issued = [("x", k) for k in range(G1_D) for _ in range(2)]
    def wait_for(kk):
        last = max(i for i, t in enumerate(issued) if t == ("x", kk))
        return len(issued) - 1 - last
    w2f = 0
    for ln in wreads(0): A(ln)
    A(f"s_waitcnt vmcnt({wait_for(0)})")
    for ln in swaps(0): A(ln)
    A("s_nop 0")
    for kk in range(20):
        x = G1_X + 8 * (kk % G1_D)
        mf = []
        for n in range(7):
            for p in range(2):
                w = G1_W[kk & 1] + 4 * n
                c = g1_acc(p, n)
                cin = "0" if kk == 0 else f"v[{c}:{c+3}]"
                mf.append(f"v_mfma_f32_16x16x32_bf16 v[{c}:{c+3}], v[{w}:{w+3}], v[{x+4*p}:{x+4*p+3}], {cin}")
        F = {}
        if kk < 19:
            for i, ln in enumerate(wreads(kk + 1)): F.setdefault(i, []).append(ln)
        if 1 <= kk <= 10:
            xl = g1_xl((kk + 9) % G1_D, 88)
            F.setdefault(7, []).append(xl[0]); F.setdefault(8, []).append(xl[1] + "\ns_add_u32 s88, s88, 2048")
            issued += [("x", kk + 9)] * 2
        if w2_loads:
            for j in range(w2_loads):
                F.setdefault(8 + j, []).append(w2_load(w2f))
                issued.append(("w", w2f)); w2f += 1
        if kk == 16:
            for i, l in enumerate(gather_addr()): F.setdefault(7 + i // 2, []).append(l)
            F.setdefault(9, []).append("s_add_u32 s93, s89, 4096")
        if kk == 17:
            for i, l in enumerate(gather_loads(89, 5, G1_GT)):
                F.setdefault(7 + min(i // 2, 2), []).append(l); issued.append(("g", 0))
        if kk < 19:
            F.setdefault(10, []).append(f"s_waitcnt vmcnt({wait_for(kk + 1)})")
            sw = swaps(kk + 1)
            F.setdefault(11, []).append(sw[0]); F.setdefault(12, []).append(sw[1])
        if kk == 19:
            F.setdefault(0, []).append(f"v_lshrrev_b32 v9, 4, v1\nv_lshlrev_b32 v9, 4, v9\ns_mul_i32 s62, s{S_CT}, 448\ns_add_u32 s62, s62, {CS}")
            for n in range(7):
                F.setdefault(2 + n, []).append(f"buffer_load_dwordx4 v[{72+4*n}:{75+4*n}], v9, s[{WS}:{WS+3}], s62 offen offset:{64*n} sc1")
        A("s_waitcnt lgkmcnt(0)")
        interleave(A, mf, F)
    return w2f

def g1_epilogue(A):
    A("s_waitcnt vmcnt(7)")
    revalidate(A, gather_loads(89, 5, G1_GT), range(G1_GT, G1_GT + 20), 6)
    gather_finish(A, 5, G1_GT, 124, 640, 100)
    A(f"""s_mul_i32 s62, s{S_RB}, {108*1024}
    s_mul_i32 s63, s{S_CT}, {7*1024}
    s_add_u32 s62, s62, s63
    s_add_u32 s62, s62, s{S_H}
    s_waitcnt vmcnt(0)""")
    lab = A.newlabel("g1skip")
    for n in range(7):
        if n == 3:
            A(f"s_cmp_eq_u32 s{S_CT}, 15\ns_cbranch_scc1 {lab}")
        o = 128 + 4 * n
        for p in range(2):
            c = g1_acc(p, n); mu = 124 + 2 * p
            for d in range(2):
                A(f"v_pk_fma_f32 v[{c+2*d}:{c+2*d+1}], v[{72+4*n+2*d}:{72+4*n+2*d+1}], v[{mu}:{mu+1}], v[{c+2*d}:{c+2*d+1}] op_sel_hi:[1,0,1] neg_lo:[0,1,0] neg_hi:[0,1,0]")
            for d in range(2):
                A(f"v_pk_mul_f32 v[{c+2*d}:{c+2*d+1}], v[{c+2*d}:{c+2*d+1}], v[{mu}:{mu+1}] op_sel:[0,1] op_sel_hi:[1,1]")
            for d in range(2):
                A(f"v_cvt_pk_bf16_f32 v{o+2*p+d}, v{c+2*d}, v{c+2*d+1}")
            for d in range(2):
                A(f"v_pk_max_i16 v{o+2*p+d}, v{o+2*p+d}, 0")
        A(f"buffer_store_dwordx4 v[{o}:{o+3}], v2, s[{WS}:{WS+3}], s62 offen offset:{1024*(n%4)} sc1")
        if n == 3: A("s_add_u32 s62, s62, 4096")
    A.label(lab)

G2_ACC, G2_H, G2_D = 16, 96, 6
def g2_acc(rb, p, n): return G2_ACC + 4 * (10 * rb + 2 * n + p)
def g2_hl(slot, sa, sb):
    h = G2_H + 16 * slot
    return [f"buffer_load_dwordx4 v[{h}:{h+3}], v2, s[{WS}:{WS+3}], s{sa} offen sc1",
            f"buffer_load_dwordx4 v[{h+4}:{h+7}], v2, s[{WS}:{WS+3}], s{sa} offen offset:1024 sc1",
            f"buffer_load_dwordx4 v[{h+8}:{h+11}], v2, s[{WS}:{WS+3}], s{sb} offen sc1",
            f"buffer_load_dwordx4 v[{h+12}:{h+15}], v2, s[{WS}:{WS+3}], s{sb} offen offset:1024 sc1"]

def g2_addr(A, da, db):
    A(f"""s_mul_i32 s62, s{S_WAVE}, 14
    s_cmp_ge_u32 s{S_WAVE}, 3
    s_cselect_b32 s63, 1, 0
    s_sub_u32 s62, s62, s63                  ; kb0
    s_lshl_b32 s62, s62, 11
    s_add_u32 s62, s62, s{S_H}
    s_mul_i32 s63, s{S_RBO}, {108*1024}
    s_add_u32 s{da}, s62, s63
    s_xor_b32 s63, s{S_RBO}, 1
    s_mul_i32 s63, s63, {108*1024}
    s_add_u32 s{db}, s62, s63""")

def g2_wait_h(A):
    A(f"""s_mul_i32 s62, s{S_WAVE}, 28
    s_cmp_ge_u32 s{S_WAVE}, 3
    s_cselect_b32 s63, 2, 0
    s_sub_u32 s62, s62, s63
    s_mul_i32 s62, s62, 9363
    s_lshr_b32 s62, s62, 16
    s_lshl_b32 s63, s{S_LAYER}, 13
    s_add_u32 s63, s63, {FH}
    v_lshrrev_b32 v6, 1, v1
    v_min_u32 v6, 4, v6
    v_add_u32 v6, s62, v6
    v_min_u32 v6, 15, v6
    v_and_b32 v8, 1, v1
    v_xor_b32 v8, s{S_RBO}, v8
    v_lshlrev_b32 v8, 7, v8
    v_lshl_add_u32 v7, v6, 2, v8
    v_add_u32 v7, s63, v7""")
    flag_wait(A, 7, 6)

def g1_publish_h(A):
    A(f"""s_lshl_b32 s62, s{S_LAYER}, 13
    s_lshl_b32 s63, s{S_RB}, 7
    s_add_u32 s62, s62, s63
    s_lshl_b32 s63, s{S_CT}, 2
    s_add_u32 s62, s62, s63
    s_add_u32 s62, s62, {FH}""")
    flag_set(A, 62)

def g1_wait_x3(A):
    A(f"""v_and_b32 v6, 15, v1
    v_lshlrev_b32 v6, 2, v6
    s_lshl_b32 s62, s{S_RB}, 7
    s_add_u32 s62, s62, {FX3}
    v_add_u32 v7, s62, v6""")
    flag_wait(A, 7, 6)

def g2_publish_x3(A):
    A(f"""s_lshl_b32 s62, s{S_RBO}, 7
    s_lshl_b32 s63, s{S_CT2}, 1
    s_add_u32 s63, s63, s{S_ODD}
    s_lshl_b32 s63, s63, 2
    s_add_u32 s62, s62, s63
    s_add_u32 s62, s62, {FX3}""")
    flag_set(A, 62)

def g2_issue(A):
    g2_addr(A, 90, 91)
    for i in range(G2_D):
        for l in g2_hl(i, 90, 91): A(l)
        A("s_add_u32 s90, s90, 2048\ns_add_u32 s91, s91, 2048")

def g2_main(A, extra_young=0, w2_from=None):
    lab = A.newlabel("g2end")
    issued = [("h", k) for k in range(G2_D) for _ in range(4)] + [("e", 0)] * extra_young
    def wait_for(tag_):
        last = max(i for i, t in enumerate(issued) if t == tag_)
        return len(issued) - 1 - last
    def swaps(i):
        h = G2_H + 16 * (i % G2_D)
        return [f"v_swap_b32 v{h+2}, v{h+4}", f"v_swap_b32 v{h+3}, v{h+5}", f"v_swap_b32 v{h+10}, v{h+12}", f"v_swap_b32 v{h+11}, v{h+13}"]
    wf = w2_from
    A(f"s_waitcnt vmcnt({wait_for(('h', 0))})")
    for ln in swaps(0): A(ln)
    A("s_nop 0")
    for i in range(14):
        h = G2_H + 16 * (i % G2_D)
        if i == 13:
            A(f"s_cmp_ge_u32 s{S_WAVE}, 2\ns_cbranch_scc1 {lab}")
        mf = []
        for n in range(5):
            for rb in range(2):
                for p in range(2):
                    c = g2_acc(rb, p, n)
                    cin = "0" if i == 0 else f"v[{c}:{c+3}]"
                    mf.append(f"v_mfma_f32_16x16x32_bf16 v[{c}:{c+3}], {w2reg(5*i+n)}, v[{h+8*rb+4*p}:{h+8*rb+4*p+3}], {cin}")
        F = {}
        if 1 <= i <= 8:
            hl = g2_hl((i + 5) % G2_D, 90, 91)
            hl[1] += "\ns_add_u32 s90, s90, 2048"; hl[3] += "\ns_add_u32 s91, s91, 2048"
            for j, ln in enumerate(hl): F.setdefault(j, []).append(ln)
            issued += [("h", i + 5)] * 4
        if wf is not None and wf < 70:
            for j in range(5):
                F.setdefault(5 + j, []).append(w2_load(wf))
                issued.append(("w", wf // 5)); wf += 1
        if i < 13:
            need = [wait_for(("h", i + 1))]
            if any(t == ("w", i + 1) for t in issued): need.append(wait_for(("w", i + 1)))
            F.setdefault(13, []).append(f"s_waitcnt vmcnt({min(need)})")
            for j, ln in enumerate(swaps(i + 1)): F.setdefault(14 + j, []).append(ln)
        interleave(A, mf, F)
    A.label(lab)
    A("s_waitcnt vmcnt(0)")

def g2_reduce(A):
    A(f"""s_lshr_b32 s62, s{S_WAVE}, 1
    s_mul_i32 s63, s62, {5*2048}
    s_xor_b32 s62, s62, 1
    s_mul_i32 s64, s62, {5*2048}
    s_mul_i32 s65, s{S_ODD}, {3*2048}
    s_sub_u32 s66, 1, s{S_ODD}
    s_lshl_b32 s66, s66, 12                  ; even: 2*2048
    s_add_u32 s62, s63, s65
    s_add_u32 s62, s62, {RED}
    v_add_u32 v3, s62, v2
    s_add_u32 s62, s63, s66
    s_add_u32 s62, s62, {RED}
    v_add_u32 v4, s62, v2
    s_add_u32 s62, s64, s65
    s_add_u32 s62, s62, {RED}
    v_add_u32 v5, s62, v2
    s_add_u32 s62, s64, s66
    s_add_u32 s62, s62, {RED}
    v_add_u32 v6, s62, v2""")
    def wr(rb, n):
        base = (3 if rb == 0 else 5) + (0 if n < 2 else 1)
        off = 2048 * (n if n < 2 else n - 2)
        c = g2_acc(rb, 0, n)
        A(f"ds_write_b128 v{base}, v[{c}:{c+3}] offset:{off}\nds_write_b128 v{base}, v[{c+4}:{c+7}] offset:{off+1024}")
    T = 96
    def writes(t):
        rb = 0 if t == 1 else 1
        l1 = A.newlabel("rw")
        if t == 2:
            wr(rb, 0); wr(rb, 1)
            A(f"s_cmp_eq_u32 s{S_ODD}, 1\ns_cbranch_scc1 {l1}")
            wr(rb, 2)
        else:
            wr(rb, 3); wr(rb, 4)
            A(f"s_cmp_eq_u32 s{S_ODD}, 0\ns_cbranch_scc1 {l1}")
            wr(rb, 2)
        A.label(l1)
    def adds():
        for n in range(3):
            c = g2_acc(0, 0, n)
            for x in range(0, 8, 2):
                A(f"v_pk_add_f32 v[{c+x}:{c+x+1}], v[{c+x}:{c+x+1}], v[{T+8*n+x}:{T+8*n+x+1}]")
    writes(1)
    for t in (1, 2, 3):
        A("s_waitcnt lgkmcnt(0)\ns_barrier")
        for n in range(3):
            base = 3 if n < 2 else 4
            off = 2048 * (n if n < 2 else 0)
            A(f"ds_read_b128 v[{T+8*n}:{T+8*n+3}], v{base} offset:{off}\nds_read_b128 v[{T+8*n+4}:{T+8*n+7}], v{base} offset:{off+1024}")
        A("s_waitcnt lgkmcnt(0)")
        if t < 3:
            A("s_barrier")
            writes(t + 1)
        adds()

def g2_res_loads(with_y):
    out = [f"buffer_load_dwordx4 v[{192+4*n}:{195+4*n}], v2, s[{WS}:{WS+3}], s64 offen offset:{1024*n} sc1" for n in range(3)]
    if with_y:
        out += [f"buffer_load_dwordx4 v[{204+4*n}:{207+4*n}], v2, s[{WS}:{WS+3}], s65 offen offset:{1024*n} sc1" for n in range(3)]
    return out

def g2_res_addr(A):
    A(f"""s_add_u32 s64, s92, s{S_X}
    s_add_u32 s65, s92, {YQ}""")

def g2_res_issue(A, with_y):
    g2_res_addr(A)
    L = g2_res_loads(with_y)
    for l in L: A(l)
    return len(L)

def g2_add_residual(A):
    for n in range(3):
        c = g2_acc(0, 0, n); x = 192 + 4 * n
        for h in range(2):
            for d in range(2):
                t = 8 + 2 * ((2 * h + d) % 2)
                A(f"""v_lshlrev_b32 v{t}, 16, v{x+2*h+d}
                v_and_b32 v{t+1}, 0xffff0000, v{x+2*h+d}
                v_pk_add_f32 v[{c+4*h+2*d}:{c+4*h+2*d+1}], v[{c+4*h+2*d}:{c+4*h+2*d+1}], v[{t}:{t+1}]""")

def g2_epilogue_mid(A):
    g2_add_residual(A)
    A("v_mov_b32 v100, 0\nv_mov_b32 v101, 0\nv_mov_b32 v102, 0\nv_mov_b32 v103, 0")
    lab = A.newlabel("ps")
    for n in range(3):
        if n == 2: A(f"s_cmp_eq_u32 s{S_ODD}, 1\ns_cbranch_scc1 {lab}")
        c = g2_acc(0, 0, n)
        for x in range(4):
            for h in range(2):
                A(f"v_add_f32 v{100+2*h}, v{100+2*h}, v{c+4*h+x}\nv_fmac_f32 v{101+2*h}, v{c+4*h+x}, v{c+4*h+x}")
    A.label(lab)
    red_g(A, [100, 101, 102, 103], 104)
    A(f"""s_lshl_b32 s62, s{S_RBO}, 12
    s_add_u32 s93, s62, {PST2}
    s_lshl_b32 s62, s{S_CT2}, 1
    s_add_u32 s62, s62, s{S_ODD}
    s_lshl_b32 s62, s62, 8
    s_add_u32 s62, s62, s93
    s_mov_b64 s[98:99], exec
    s_mov_b64 exec, 0xffff
    buffer_store_dwordx4 v[100:103], v2, s[{WS}:{WS+3}], s62 offen sc1
    s_mov_b64 exec, s[98:99]""")
    for l in gather_addr(): A(l)
    load_validated(A, gather_loads(93, 4, 104), range(104, 120), 6)
    gather_finish(A, 4, 104, 124, 640, 100)
    A(f"""v_mul_f32 v122, v124, v125
    v_mul_f32 v123, v126, v127
    s_add_u32 s62, s92, {X3Q}""")
    lab = A.newlabel("x3")
    for n in range(3):
        if n == 2: A(f"s_cmp_eq_u32 s{S_ODD}, 1\ns_cbranch_scc1 {lab}")
        c = g2_acc(0, 0, n); y = 204 + 4 * n; o = 128 + 4 * n
        for h in range(2):
            r_, mr = 125 + 2 * h, 122 + h
            for d in range(2):
                e = c + 4 * h + 2 * d
                A(f"""v_lshlrev_b32 v8, 16, v{y+2*h+d}
                v_and_b32 v9, 0xffff0000, v{y+2*h+d}
                v_fma_f32 v10, v{e}, v{r_}, -v{mr}
                v_fma_f32 v11, v{e+1}, v{r_}, -v{mr}
                v_fmac_f32 v{e}, v10, v8
                v_fmac_f32 v{e+1}, v11, v9
                v_cvt_pk_bf16_f32 v{o+2*h+d}, v{e}, v{e+1}""")
        A(f"buffer_store_dwordx4 v[{o}:{o+3}], v2, s[{WS}:{WS+3}], s62 offen offset:{1024*n} sc1")
    A.label(lab)

def g2_epilogue_out(A):
    g2_add_residual(A)
    srd(A, SA, P_OUT, S_ * D_ * 2)
    A(f"""v_and_b32 v6, 15, v1
    v_mul_u32_u24 v6, 2560, v6
    v_lshrrev_b32 v7, 4, v1
    v_lshl_add_u32 v6, v7, 3, v6
    s_mul_i32 s62, s{S_RBO}, {32*1280}
    s_mul_i32 s63, s{S_CT2}, 160
    s_add_u32 s62, s62, s63
    s_mul_i32 s63, s{S_ODD}, 96
    s_add_u32 s62, s62, s63""")
    lab = A.newlabel("out")
    for n in range(3):
        if n == 2: A(f"s_cmp_eq_u32 s{S_ODD}, 1\ns_cbranch_scc1 {lab}")
        c = g2_acc(0, 0, n); o = 128 + 4 * n
        for h in range(2):
            for d in range(2):
                A(f"v_cvt_pk_bf16_f32 v{o+2*h+d}, v{c+4*h+2*d}, v{c+4*h+2*d+1}")
        A(f"""buffer_store_dwordx2 v[{o}:{o+1}], v6, s[{SA}:{SA+3}], s62 offen offset:{32*n}
        buffer_store_dwordx2 v[{o+2}:{o+3}], v6, s[{SA}:{SA+3}], s62 offen offset:{32*n + 1280}""")
    A.label(lab)
```

```python
from common import *

P0_RS = 144
P0_LDS = 0

def p0_kv_issue(A):
    srd(A, SA, P_K, S_ * D_ * 2)
    srd(A, SB, P_V, S_ * D_ * 2)
    srd(A, SC, P_SK, D_ * 8)
    A(f"""s_lshr_b32 s62, s{S_WG}, 4          ; cg
    s_and_b32 s63, s{S_WG}, 15             ; tb
    s_mul_i32 s64, s63, {128 * 1280}
    s_lshl_b32 s65, s62, 7
    s_add_u32 s64, s64, s65
    v_and_b32 v6, 7, v0                    ; chunk
    v_lshrrev_b32 v7, 3, v0                ; rg
    v_mul_u32_u24 v8, 5120, v7
    v_lshl_add_u32 v8, v6, 4, v8
    v_add_u32 v8, s64, v8
    v_subrev_u32 v9, 3840, v8
    v_subrev_u32 v10, 2560, v8
    v_subrev_u32 v11, 1280, v8
    s_lshl_b32 s65, s62, 9                 ; cg*512
    v_lshlrev_b32 v12, 6, v6
    v_add_u32 v12, s65, v12
    buffer_load_dwordx4 v[16:19], v9, s[{SA}:{SA+3}], 0 offen
    buffer_load_dwordx4 v[20:23], v10, s[{SA}:{SA+3}], 0 offen
    buffer_load_dwordx4 v[24:27], v11, s[{SA}:{SA+3}], 0 offen""")
    for i in range(4):
        A(f"buffer_load_dwordx4 v[{28+4*i}:{31+4*i}], v8, s[{SA}:{SA+3}], 0 offen offset:{1280*i}")
    for i in range(4):
        A(f"buffer_load_dwordx4 v[{44+4*i}:{47+4*i}], v8, s[{SB}:{SB+3}], 0 offen offset:{1280*i}")
    for i in range(4):
        A(f"buffer_load_dwordx4 v[{60+4*i}:{63+4*i}], v12, s[{SC}:{SC+3}], 0 offen offset:{16*i}")

def p0_kv_compute(A, pending_after):
    W = 80
    K = 112
    V = 168
    T = 32
    A(f"s_waitcnt vmcnt({pending_after})")
    poll_addr(A, 249, 0, 1)
    poll_issue(A, 248, 249, DBG)
    for c in range(8):
        d0 = 60 + 2 * c; d1 = d0 + 1
        A(f"""v_lshlrev_b32 v{W+0*8+c}, 16, v{d0}
        v_and_b32 v{W+1*8+c}, 0xffff0000, v{d0}
        v_lshlrev_b32 v{W+2*8+c}, 16, v{d1}
        v_and_b32 v{W+3*8+c}, 0xffff0000, v{d1}""")
    for r in range(7):
        for d in range(4):
            A(f"""v_lshlrev_b32 v{K+8*r+2*d}, 16, v{16+4*r+d}
            v_and_b32 v{K+8*r+2*d+1}, 0xffff0000, v{16+4*r+d}""")
    for r in range(4):
        for d in range(4):
            A(f"""v_lshlrev_b32 v{V+8*r+2*d}, 16, v{44+4*r+d}
            v_and_b32 v{V+8*r+2*d+1}, 0xffff0000, v{44+4*r+d}""")
    A(f"""v_lshlrev_b32 v15, 2, v7
    v_sub_u32 v15, 127, v15
    v_mul_u32_u24 v15, {P0_RS}, v15
    v_lshl_add_u32 v15, v6, 4, v15
    v_add_u32 v15, {P0_LDS - 3 * P0_RS}, v15""")
    for i in range(4):
        for d in range(4):
            t = T + 2 * d
            A(f"v_pk_mul_f32 v[{t}:{t+1}], v[{W+2*d}:{W+2*d+1}], v[{K+8*(i+3)+2*d}:{K+8*(i+3)+2*d+1}]")
        for j in range(1, 4):
            for d in range(4):
                t = T + 2 * d
                A(f"v_pk_fma_f32 v[{t}:{t+1}], v[{W+8*j+2*d}:{W+8*j+2*d+1}], v[{K+8*(i+3-j)+2*d}:{K+8*(i+3-j)+2*d+1}], v[{t}:{t+1}]")
        for d in range(4):
            t = T + 2 * d
            A(f"v_pk_mul_f32 v[{t}:{t+1}], v[{t}:{t+1}], v[{V+8*i+2*d}:{V+8*i+2*d+1}]")
        o = 16 + 4 * i
        for d in range(4):
            t = T + 2 * d
            A(f"v_cvt_pk_bf16_f32 v{o+d}, v{t}, v{t+1}")
        A(f"ds_write_b128 v15, v[{o}:{o+3}] offset:{(3-i)*P0_RS}")
    A("s_waitcnt lgkmcnt(0)\ns_barrier")
    A(f"""v_lshrrev_b32 v6, 4, v1
    v_lshlrev_b32 v6, 5, v6
    v_and_b32 v7, 3, v1
    v_lshl_add_u32 v6, v7, 3, v6
    v_bfe_u32 v7, v1, 2, 2
    v_add_u32 v6, v6, v7
    v_mul_u32_u24 v6, {P0_RS}, v6
    s_lshl_b32 s65, s{S_WAVE}, 5
    s_add_u32 s65, s65, {P0_LDS}
    v_add_u32 v6, s65, v6""")
    for qq in range(4):
        A(f"""ds_read_b64_tr_b16 v[{16+4*qq}:{17+4*qq}], v6 offset:{8*qq}
        ds_read_b64_tr_b16 v[{18+4*qq}:{19+4*qq}], v6 offset:{8*qq + 4*P0_RS}""")
    A(f"""s_lshl_b32 s65, s62, 4
    s_lshl_b32 s66, s{S_WAVE}, 2
    s_add_u32 s65, s65, s66
    s_lshl_b32 s65, s65, 14
    s_sub_u32 s66, 15, s63
    s_lshl_b32 s66, s66, 10
    s_add_u32 s65, s65, s66
    s_add_u32 s65, s65, {KVT}""")
    for qq in range(4):
        A(f"""s_waitcnt lgkmcnt({6 - 2*qq})
        buffer_store_dwordx4 v[{16+4*qq}:{19+4*qq}], v2, s[{WS}:{WS+3}], s65 offen sc1
        s_add_u32 s65, s65, 16384""")

QT_RS = 1280 + 16
def task_q(A, extra=None):
    srd(A, SA, P_Q, S_ * D_ * 2)
    A(f"""s_sub_u32 s62, s{S_WG}, 160           ; rb32
    s_mul_i32 s63, s62, {32*1280}""")
    A(f"v_lshlrev_b32 v6, 4, v0")
    for i in range(10):
        A(f"buffer_load_dwordx4 v[{16+4*i}:{19+4*i}], v6, s[{SA}:{SA+3}], s63 offen offset:0" if i == 0 else
          f"s_add_u32 s64, s63, {4096*i}\nbuffer_load_dwordx4 v[{16+4*i}:{19+4*i}], v6, s[{SA}:{SA+3}], s64 offen")
    sv = "s62"
    A("s_mov_b32 s64, 0x3333334")
    for i in range(10):
        A(f"""v_add_u32 v7, {256*i}, v0
        v_mul_hi_u32 v8, v7, s64           ; row
        v_add_u32 v8, v8, v7
        v_lshlrev_b32 v{60+i}, 4, v8""")
    if extra:
        A("s_mov_b32 s65, s62\ns_mov_b32 s66, s63")
        extra(A)
        A("s_mov_b32 s62, s65\ns_mov_b32 s63, s66\ns_waitcnt vmcnt(0)")
    for i in range(10):
        if not extra: A(f"s_waitcnt vmcnt({9-i})")
        A(f"ds_write_b128 v{60+i}, v[{16+4*i}:{19+4*i}]")
    A("s_waitcnt lgkmcnt(0)\ns_barrier")
    A(f"""v_and_b32 v6, 15, v1
    v_lshrrev_b32 v7, 4, v1
    v_mul_u32_u24 v8, {2*QT_RS}, v6
    v_lshl_add_u32 v8, v7, 3, v8
    s_mul_i32 s64, s{S_WAVE}, 320
    v_add_u32 v8, s64, v8""")
    for n in range(10):
        A(f"""ds_read_b64 v[{16+4*n}:{17+4*n}], v8 offset:{32*n}
        ds_read_b64 v[{18+4*n}:{19+4*n}], v8 offset:{32*n + QT_RS}""")
    A(f"""s_mul_i32 s64, s62, 40
    s_mul_i32 s65, s{S_WAVE}, 10
    s_add_u32 s64, s64, s65
    s_lshl_b32 s64, s64, 10
    s_add_u32 s64, s64, {QQ}""")
    A("s_waitcnt lgkmcnt(0)")
    for n in range(10):
        A(f"""buffer_store_dwordx4 v[{16+4*n}:{19+4*n}], v2, s[{WS}:{WS+3}], s64 offen sc1
        s_add_u32 s64, s64, 1024""")
    for n in range(10):
        for d in range(2):
            A(f"""v_lshlrev_b32 v{64+4*n+2*d}, 16, v{16+4*n+d}
            v_and_b32 v{65+4*n+2*d}, 0xffff0000, v{16+4*n+d}
            v_lshlrev_b32 v{104+4*n+2*d}, 16, v{18+4*n+d}
            v_and_b32 v{105+4*n+2*d}, 0xffff0000, v{18+4*n+d}""")
    def reduce_lanes_waves(e, o, ldsbase):
        for r in (e, o):
            A(f"""v_mov_b32 v10, v{r}
            s_nop 1
            v_permlane32_swap_b32 v{r}, v10
            v_add_f32 v{r}, v{r}, v10
            v_mov_b32 v10, v{r}
            s_nop 1
            v_permlane16_swap_b32 v{r}, v10
            v_add_f32 v{r}, v{r}, v10""")
        A(f"""v_and_b32 v10, 15, v1
        v_lshlrev_b32 v10, 3, v10
        s_lshl_b32 s65, s{S_WAVE}, 7
        v_add_u32 v11, s65, v10
        v_mov_b32 v158, v{e}
        v_mov_b32 v159, v{o}
        ds_write_b64 v11, v[158:159] offset:{ldsbase}
        s_waitcnt lgkmcnt(0)
        s_barrier""")
        for w in range(4):
            A(f"ds_read_b64 v[{150+2*w}:{151+2*w}], v10 offset:{ldsbase + 128*w}")
        A(f"""s_waitcnt lgkmcnt(0)
        v_add_f32 v{e}, v150, v152
        v_add_f32 v{o}, v151, v153
        v_add_f32 v{e}, v{e}, v154
        v_add_f32 v{o}, v{o}, v155
        v_add_f32 v{e}, v{e}, v156
        v_add_f32 v{o}, v{o}, v157""")
    RB = 32 * QT_RS
    A("v_mov_b32 v144, 0\nv_mov_b32 v145, 0")
    for x in range(40):
        A(f"v_add_f32 v144, v144, v{64+x}\nv_add_f32 v145, v145, v{104+x}")
    reduce_lanes_waves(144, 145, RB)
    A(f"""v_mul_f32 v144, {hex(f2u(1/640))}, v144
    v_mul_f32 v145, {hex(f2u(1/640))}, v145
    v_mov_b32 v146, 0
    v_mov_b32 v147, 0""")
    for x in range(40):
        A(f"""v_sub_f32 v10, v{64+x}, v144
        v_sub_f32 v11, v{104+x}, v145
        v_fmac_f32 v146, v10, v10
        v_fmac_f32 v147, v11, v11""")
    reduce_lanes_waves(146, 147, RB + 512)
    A(f"""v_mov_b32 v10, {hex(f2u(1e-5))}
    v_fmac_f32 v10, {hex(f2u(1/640))}, v146
    v_mov_b32 v11, {hex(f2u(1e-5))}
    v_fmac_f32 v11, {hex(f2u(1/640))}, v147
    v_rsq_f32 v10, v10
    v_rsq_f32 v11, v11
    v_mov_b32 v148, v144
    v_mov_b32 v150, v145
    v_mov_b32 v149, v10
    v_mov_b32 v151, v11""")
    lab = A.newlabel("qst")
    A(f"""s_cmp_lg_u32 s{S_WAVE}, 0
    s_cbranch_scc1 {lab}
    s_lshl_b32 s64, s62, 8
    s_add_u32 s64, s64, {ST0}
    s_mov_b64 s[98:99], exec
    s_mov_b64 exec, 0xffff
    buffer_store_dwordx4 v[148:151], v2, s[{WS}:{WS+3}], s64 offen sc1
    s_mov_b64 exec, s[98:99]""")
    A.label(lab)

import struct
def f2u(x):
    return struct.unpack("<I", struct.pack("<f", x))[0]

def task_w2(A, kb_sreg):
    srd(A, SA, P_W2, F_ * D_ * 2)
    A(f"""s_mul_i32 s63, s{kb_sreg}, {32*1280}
    v_lshlrev_b32 v6, 4, v0""")
    for i in range(10):
        A(f"s_add_u32 s64, s63, {4096*i}\nbuffer_load_dwordx4 v[{16+4*i}:{19+4*i}], v6, s[{SA}:{SA+3}], s64 offen")
    A("s_mov_b32 s64, 0x3333334")
    for i in range(10):
        A(f"""v_add_u32 v7, {256*i}, v0
        v_mul_hi_u32 v8, v7, s64
        v_add_u32 v8, v8, v7
        v_lshlrev_b32 v{60+i}, 4, v8""")
    A("s_barrier")
    for i in range(10):
        A(f"s_waitcnt vmcnt({9-i})\nds_write_b128 v{60+i}, v[{16+4*i}:{19+4*i}]")
    A("s_waitcnt lgkmcnt(0)\ns_barrier")
    A(f"""v_lshrrev_b32 v6, 4, v1
    v_lshlrev_b32 v6, 2, v6
    v_bfe_u32 v7, v1, 2, 2
    v_add_u32 v6, v6, v7
    v_mul_u32_u24 v6, {QT_RS}, v6
    v_and_b32 v7, 3, v1
    v_lshl_add_u32 v6, v7, 3, v6
    s_mul_i32 s64, s{S_WAVE}, 320
    v_add_u32 v6, s64, v6""")
    for n in range(10):
        A(f"""ds_read_b64_tr_b16 v[{16+4*n}:{17+4*n}], v6 offset:{32*n}
        ds_read_b64_tr_b16 v[{18+4*n}:{19+4*n}], v6 offset:{32*n + 16*QT_RS}""")
    A(f"""s_lshl_b32 s64, s{S_WAVE}, 1
    s_mul_i32 s64, s64, 54
    s_add_u32 s64, s64, s{kb_sreg}
    s_mul_i32 s64, s64, {5*1024}
    s_add_u32 s64, s64, {W2P}""")
    for n in range(10):
        if n == 5:
            A(f"s_add_u32 s64, s64, {54*5*1024 - 5*1024}")
        A(f"""s_waitcnt lgkmcnt({min(15, 18 - 2*n)})
        buffer_store_dwordx4 v[{16+4*n}:{19+4*n}], v2, s[{WS}:{WS+3}], s64 offen sc1
        s_add_u32 s64, s64, 1024""")

W1_RS = 128 + 16
def task_w1(A, t_sreg):
    srd(A, SA, P_W1, D_ * F_ * 2)
    A(f"""v_lshrrev_b32 v6, 3, v0
    v_and_b32 v7, 7, v0
    v_mul_u32_u24 v8, {F_*2}, v6
    v_lshl_add_u32 v8, v7, 4, v8
    s_lshl_b32 s63, s{t_sreg}, 7
    v_mul_u32_u24 v9, {W1_RS}, v6
    v_lshl_add_u32 v9, v7, 4, v9""")
    for i in range(20):
        A(f"buffer_load_dwordx4 v[{16+4*i}:{19+4*i}], v8, s[{SA}:{SA+3}], s63 offen\ns_add_u32 s63, s63, {32*F_*2}")
    for i in range(20):
        A(f"s_waitcnt vmcnt({19-i})\nds_write_b128 v9, v[{16+4*i}:{19+4*i}] offset:{(32*W1_RS*i) % 65536 if False else 0}" if False else
          f"s_waitcnt vmcnt({19-i})\nds_write_b128 v9, v[{16+4*i}:{19+4*i}]\nv_add_u32 v9, {32*W1_RS}, v9")
    A("s_waitcnt lgkmcnt(0)\ns_barrier")
    A(f"""v_lshrrev_b32 v6, 4, v1
    v_lshlrev_b32 v6, 2, v6
    v_bfe_u32 v7, v1, 2, 2
    v_add_u32 v6, v6, v7
    v_mul_u32_u24 v6, {W1_RS}, v6
    v_and_b32 v7, 3, v1
    v_lshl_add_u32 v6, v7, 3, v6
    s_lshl_b32 s64, s{S_WAVE}, 5
    v_add_u32 v6, s64, v6""")
    A(f"""s_lshl_b32 s64, s{t_sreg}, 2
    s_add_u32 s64, s64, s{S_WAVE}           ; nb
    s_mul_i32 s65, s64, 9363
    s_lshr_b32 s65, s65, 16
    s_mul_i32 s66, s65, 7
    s_sub_u32 s66, s64, s66                 ; nbl
    s_mul_i32 s65, s65, 140
    s_add_u32 s65, s65, s66
    s_lshl_b32 s65, s65, 10
    s_add_u32 s65, s65, {W1P}""")
    A("v_mov_b32 v100, 0x3f803f80\nv_mov_b32 v101, 0x3f803f80\nv_mov_b32 v102, 0x3f803f80\nv_mov_b32 v103, 0x3f803f80")
    A("v_mov_b32 v104, 0\nv_mov_b32 v105, 0\nv_mov_b32 v106, 0\nv_mov_b32 v107, 0")
    for kb in range(20):
        A(f"""ds_read_b64_tr_b16 v[{16+4*kb}:{17+4*kb}], v6
        ds_read_b64_tr_b16 v[{18+4*kb}:{19+4*kb}], v6 offset:{16*W1_RS}
        v_add_u32 v6, {32*W1_RS}, v6""")
        if kb >= 4:
            k2 = kb - 4
            A(f"""s_waitcnt lgkmcnt(8)
            buffer_store_dwordx4 v[{16+4*k2}:{19+4*k2}], v2, s[{WS}:{WS+3}], s65 offen sc1
            s_add_u32 s65, s65, {7*1024}
            v_mfma_f32_16x16x32_bf16 v[104:107], v[{16+4*k2}:{19+4*k2}], v[100:103], v[104:107]""")
    A("s_waitcnt lgkmcnt(0)")
    for k2 in range(16, 20):
        A(f"""buffer_store_dwordx4 v[{16+4*k2}:{19+4*k2}], v2, s[{WS}:{WS+3}], s65 offen sc1
        s_add_u32 s65, s65, {7*1024}
        v_mfma_f32_16x16x32_bf16 v[104:107], v[{16+4*k2}:{19+4*k2}], v[100:103], v[104:107]""")
    A(f"""s_lshl_b32 s64, s64, 6
    s_add_u32 s64, s64, {CS}
    v_lshrrev_b32 v6, 4, v1
    v_lshlrev_b32 v6, 4, v6
    v_and_b32 v7, 15, v1
    v_cmp_eq_u32 vcc, 0, v7
    s_nop 4
    s_and_saveexec_b64 s[98:99], vcc
    buffer_store_dwordx4 v[104:107], v6, s[{WS}:{WS+3}], s64 offen sc1
    s_mov_b64 exec, s[98:99]""")
```

```python
import sys
from common import *
import p0, conv, gemm
from gemm import S_CL, S_CT, S_LAYER, S_X, S_H, S_RB, S_RBO

TARGET = '.amdgcn_target "amdgcn-amd-amdhsa--gfx950"\n'
S_LATEQ, S_LATEW = 95, 96
S_LATEQ, S_LATEW = 69, 70

def code_prefetch(A, end_label):
    l0 = A.newlabel("pc")
    A(f"s_getpc_b64 s[62:63]")
    A.label(l0)
    A(f"""s_sub_u32 s62, s62, {l0}-{KN}
    s_subb_u32 s63, s63, 0
    s_mov_b32 s{SA}, s62
    s_mov_b32 s{SA+1}, s63
    s_mov_b32 s{SA+2}, {end_label}-{KN}
    s_mov_b32 s{SA+3}, 0x20000
    v_lshlrev_b32 v6, 7, v0
    buffer_load_dword v254, v6, s[{SA}:{SA+3}], 0 offen
    s_mov_b32 s62, 32768
    buffer_load_dword v255, v6, s[{SA}:{SA+3}], s62 offen""")

def fill_region(A, base, per_wg_kb, vfill, idx_sreg):
    n = per_wg_kb // 4
    A(f"""s_mul_i32 s62, s{idx_sreg}, {per_wg_kb*1024}
    s_mul_i32 s63, s{S_WAVE}, {n*1024}
    s_add_u32 s62, s62, s63
    s_add_u32 s62, s62, {base}""")
    for i in range(n):
        if i and i % 4 == 0: A("s_add_u32 s62, s62, 4096")
        A(f"buffer_store_dwordx4 v[{vfill}:{vfill+3}], v2, s[{WS}:{WS+3}], s62 offen offset:{1024*(i%4)} sc1")

DUMP = [False]
def build(prefetch=True):
    A = Asm()
    A.L.append(head(KN))
    prologue(A, 256, "L_exit")
    stamp_init(A)
    stamp(A, 0)
    gemm.ffn_ids(A)
    A(f"""s_cmp_ge_u32 s{S_WG}, 160
    s_cbranch_scc1 L_roleB""")
    p0.p0_kv_issue(A)
    conv.conv_issue_ssm(A)
    p0.p0_kv_compute(A, 12)
    stamp(A, 1)
    A(f"s_lshr_b32 s64, s{S_WG}, 4\ns_lshl_b32 s64, s64, 7\ns_add_u32 s64, s64, {cnt_off(C_KV)}")
    A("s_waitcnt vmcnt(0)")
    poll_ensure(A, 248, 249, 1, DBG)
    A("s_barrier")
    arrive(A, "s64")
    conv.conv_build(A, None)
    stamp(A, 2)
    lab = A.newlabel("kvw")
    A(f"""s_cmp_lg_u32 s{S_WAVE}, 0
    s_cbranch_scc1 {lab}
    s_lshr_b32 s64, s{S_WG}, 4
    s_lshl_b32 s64, s64, 7
    s_add_u32 s64, s64, {cnt_off(C_KV)}
    v_mov_b32 v4, s64""")
    poll_issue(A, 5, 4)
    A("s_waitcnt vmcnt(0)")
    poll_ensure(A, 5, 4, 16)
    A.label(lab)
    A("s_barrier")
    stamp(A, 3)
    conv.conv_load_u(A)
    A("s_waitcnt lgkmcnt(0)\ns_barrier")
    stamp(A, 4)
    poll_addr(A, 213, cnt_off(C_Q), 4); poll_addr(A, 215, cnt_off(C_PX), 8); poll_addr(A, 217, cnt_off(C_W1), 1)
    A(f"s_mov_b32 s{S_LATEQ}, 1\ns_mov_b32 s{S_LATEW}, 1")
    def pre3(A):
        poll_issue(A, 212, 213)
    def pre5(A):
        lab = A.newlabel("lq")
        A(f"""s_waitcnt vmcnt(0)
        v_cmp_gt_u32 vcc, 16, v212
        s_nop 1
        s_cbranch_vccnz {lab}
        s_mov_b32 s{S_LATEQ}, 0""")
        conv.conv_epilogue_loads(A)
        A.label(lab)
        poll_issue(A, 216, 217); poll_issue(A, 214, 215)
    hooks = {("pre", 3): pre3, ("pre", 5): pre5}
    conv.conv_main(A, hooks)
    stamp(A, 5)
    lab = A.newlabel("nlq")
    A(f"""s_waitcnt vmcnt(0)
    s_cmp_eq_u32 s{S_LATEQ}, 0
    s_cbranch_scc1 {lab}""")
    poll_ensure(A, 212, 213, 16)
    conv.conv_epilogue_loads(A)
    A("s_waitcnt vmcnt(0)")
    A.label(lab)
    conv.conv_epilogue(A)
    A(f"s_and_b32 s64, s{S_WG}, 15\ns_lshl_b32 s64, s64, 7\ns_add_u32 s64, s64, {cnt_off(C_CONV)}")
    signal(A, "s64")
    stamp(A, 6)
    poll_ensure(A, 216, 217, 27)
    poll_ensure(A, 214, 215, 8)
    gemm.w1_dma(A)
    A("s_branch L_ffn")
    A.label("L_roleB")
    A(f"s_sub_u32 s67, s{S_WG}, 160")
    A(f"""s_cmp_ge_u32 s{S_WG}, 224
    s_cbranch_scc0 L_qrole""")
    A(f"s_sub_u32 s67, s{S_WG}, 224")
    lab = A.newlabel("nz")
    A(f"""s_cmp_lg_u32 s{S_WG}, 255
    s_cbranch_scc1 {lab}
    v_mov_b32 v8, 0
    v_mov_b32 v9, 0
    v_mov_b32 v10, 0
    v_mov_b32 v11, 0
    s_lshl_b32 s62, s{S_WAVE}, 13""")
    for i in range(8):
        if i == 4: A("s_add_u32 s62, s62, 4096")
        A(f"buffer_store_dwordx4 v[8:11], v2, s[{WS}:{WS+3}], s62 offen offset:{1024*(i%4)} sc1")
    signal(A, 0, DBG, vt=8)
    A.label(lab)
    if prefetch:
        code_prefetch(A, "L_code_end")
    stamp(A, 1)
    A(f"""s_cmp_ge_u32 s67, 27
    s_cbranch_scc1 L_bdone""")
    p0.task_w1(A, 67)
    wait_init(A)
    signal(A, cnt_off(C_W1))
    stamp(A, 2)
    A("s_branch L_bdone")
    A.label("L_qrole")
    def q_extra(A):
        poison_regs(A, 160)
        fill_region(A, PXR, 16, 160, 67)
    p0.task_q(A, q_extra)
    A("s_waitcnt vmcnt(0)\ns_barrier")
    wait_init(A)
    A(f"s_lshr_b32 s64, s67, 4\ns_lshl_b32 s64, s64, 7\ns_add_u32 s64, s64, {cnt_off(C_Q)}")
    arrive(A, "s64")
    A(f"s_and_b32 s64, s67, 7\ns_lshl_b32 s64, s64, 7\ns_add_u32 s64, s64, {cnt_off(C_PX)}")
    arrive(A, "s64")
    stamp(A, 1)
    A(f"""s_cmp_ge_u32 s67, 54
    s_cbranch_scc1 L_bdone""")
    p0.task_w2(A, 67)
    A(f"s_and_b32 s64, s67, 1\ns_lshl_b32 s64, s64, 7\ns_add_u32 s64, s64, {cnt_off(C_W2)}")
    signal(A, "s64")
    stamp(A, 2)
    A.label("L_bdone")
    wait_init(A)
    wait_flag(A, cnt_off(C_PX), 8, 8)
    wait_flag(A, cnt_off(C_W1), 1, 27)
    A("s_barrier")
    gemm.w1_dma(A)
    A.label("L_ffn")
    wait_needed = [(cnt_off(C_PX), 8, 8), (cnt_off(C_W2), 2, 27), (cnt_off(C_P2), 16, 16)]
    gemm.w2_bases(A)
    for layer in range(2):
        b = 8 + 10 * layer
        A(f"""s_mov_b32 s{S_LAYER}, {layer}
        s_mov_b32 s{S_X}, {X1Q if layer == 0 else X3Q}
        s_mov_b32 s{S_H}, {H1Q if layer == 0 else H2Q}""")
        if layer == 0:
            stamp(A, 7)
            wait_flag_wg(A, cnt_off(C_CONV), 16, 10)
            poll_addr(A, 10, cnt_off(C_W2), 2); poll_issue(A, 11, 10)
        else:
            A(f"s_lshl_b32 s64, s{S_CL}, 7\ns_add_u32 s64, s64, {cnt_off(C_X3)}")
            wait_cnt_wg(A, 64, 16)
        stamp(A, b)
        gemm.g1_issue(A)
        gemm.g1_stats_publish(A)
        if layer == 0:
            A("s_waitcnt vmcnt(0)")
            poll_ensure(A, 11, 10, 27)
            A("s_barrier")
        stamp(A, b + 1)
        nw2 = gemm.g1_main(A, w2_loads=2 if layer == 0 else 0)
        stamp(A, b + 2)
        gemm.g1_epilogue(A)
        A(f"s_lshl_b32 s64, s{S_CL}, 7\ns_add_u32 s64, s64, {cnt_off(C_H)}")
        signal(A, "s64")
        stamp(A, b + 3)
        wait_cnt_wg(A, 64, 16 * (layer + 1))
        stamp(A, b + 4)
        gemm.g2_issue(A)
        n = gemm.g2_res_issue(A, layer == 0)
        gemm.g2_main(A, n, w2_from=nw2 if layer == 0 else None)
        stamp(A, b + 5)
        gemm.g2_reduce(A)
        if DUMP[0] and layer == 0:
            A(f"""s_lshl_b32 s62, s{S_WG}, 2
            s_add_u32 s62, s62, s{S_WAVE}
            s_mul_i32 s62, s62, 6144
            s_add_u32 s62, s62, {STAMPS + 0x100000}""")
            for n in range(3):
                c = gemm.g2_acc(0, 0, n)
                A(f"buffer_store_dwordx4 v[{c}:{c+3}], v2, s[{WS}:{WS+3}], s62 offen offset:{2048*n}") if n < 2 else A(f"s_add_u32 s63, s62, 4096\nbuffer_store_dwordx4 v[{c}:{c+3}], v2, s[{WS}:{WS+3}], s63 offen")
                A(f"buffer_store_dwordx4 v[{c+4}:{c+7}], v2, s[{WS}:{WS+3}], s62 offen offset:{2048*n+1024 if n < 1 else 2048*n+1024}") if 2048*n+1024 < 4096 else A(f"s_add_u32 s63, s62, {2048*n+1024}\nbuffer_store_dwordx4 v[{c+4}:{c+7}], v2, s[{WS}:{WS+3}], s63 offen")
        stamp(A, b + 6)
        if layer == 0:
            gemm.g2_epilogue_mid(A)
            A(f"s_lshl_b32 s64, s{S_CL}, 7\ns_add_u32 s64, s64, {cnt_off(C_X3)}")
            signal(A, "s64")
        else:
            gemm.g2_epilogue_out(A)
        stamp(A, b + 7)
    stamp_flush(A)
    A.label("L_exit")
    A("s_endpgm")
    A.label("L_code_end")
    A.L.append(desc(KN))
    txt = "; @launch grid=(256,1,1) block=(256,1,1) lds=163840\n" + TARGET + A.text()
    for p in lint(txt): print("LINT:", p)
    return txt

if __name__ == "__main__":
    out = sys.argv[1]
    if "stamp" in sys.argv[2:]: STAMP_ON[0] = True
    if "dump" in sys.argv[2:]: DUMP[0] = True
    for a in sys.argv[2:]:
        if a.startswith("dbgwg="): DBG_STAMPS[0] = (int(a[6:]), [1, 2, 3, 4, 5, 6, 8, 10, 12, 13, 15, 19, 22, 23, 25])
    open(out, "w").write(build(prefetch="nopf" not in sys.argv[2:]))
```
